```python
import torch

def _softmax(x, axis=-1):
    return torch.softmax(x, dim=axis)

def _gelu(x):
    return torch.nn.functional.gelu(x, approximate='tanh')

def _silu(x):
    return torch.nn.functional.silu(x)

def _sigmoid(x):
    return torch.sigmoid(x)

def _layernorm(x, axis=-1, eps=1e-05):
    m = x.mean(dim=axis, keepdim=True)
    v = x.var(dim=axis, keepdim=True, unbiased=False)
    return (x - m) / torch.sqrt(v + eps)

def _scatter_add(tgt, idx, src, axis=0):
    return tgt.clone().index_add_(axis, idx, src)

def _segment_sum(src, seg, n):
    out = torch.zeros((n,) + src.shape[1:], dtype=src.dtype)
    return out.index_add_(0, seg, src)

def _pad(x, pw):
    flat = tuple((v for pair in reversed(pw) for v in pair))
    return torch.nn.functional.pad(x, flat)
kernel_name = 'adaLN_cond__sliding_block__glu_gated_geglu__prompt'

def setup_inputs():

    _w = lambda a: (lambda t: t.to(torch.bfloat16) if t.is_floating_point() else t)(torch.as_tensor(a))

    def _A_setup():
        B, S, D = (1, 2048, 448)
        return {'x': _w((lambda *s: torch.randn(*s, dtype=torch.bfloat16) * 0.05)(B, S, D)), 'wqkv': _w((lambda *s: torch.randn(*s, dtype=torch.bfloat16) * 0.05)(D, 3 * D)), 'wo': _w((lambda *s: torch.randn(*s, dtype=torch.bfloat16) * 0.05)(D, D))}
    _A_in = _A_setup()

    def _B_setup():
        B, S, Dm, Df = (1, 2048, 448, 1792)
        return {'x': _w((lambda *s: torch.randn(*s, dtype=torch.bfloat16) * 0.05)(B, S, Dm)), 'w_gate': _w((lambda *s: torch.randn(*s, dtype=torch.bfloat16) * 0.8)(Dm, Df) * Dm ** (-0.5)), 'w_up': _w((lambda *s: torch.randn(*s, dtype=torch.bfloat16) * 0.8)(Dm, Df) * Dm ** (-0.5)), 'w_down': _w((lambda *s: torch.randn(*s, dtype=torch.bfloat16) * 0.8)(Df, Dm) * Df ** (-0.5))}
    _B_in = _B_setup()
    return {'A_x': _A_in['x'], 'A_wqkv': _A_in['wqkv'], 'A_wo': _A_in['wo'], 'B_x': _B_in['x'], 'B_w_gate': _B_in['w_gate'], 'B_w_up': _B_in['w_up'], 'B_w_down': _B_in['w_down'], 'c': _w((lambda *s: torch.randn(*s, dtype=torch.bfloat16) * 0.1)(1, 448) * 8.0), 'w_mod': _w((lambda *s: torch.randn(*s, dtype=torch.bfloat16) * 0.1)(448, 6 * 448) * 448 ** (-0.5) * 8.0)}

def reference(A_x, A_wqkv, A_wo, B_x, B_w_gate, B_w_up, B_w_down, c, w_mod):

    def _A_ref(x, wqkv, wo):
        B, S, D = x.shape
        H = 16
        Dh = D // H
        W = 256
        qkv = (lambda x, *d: x.permute(*d))((x @ wqkv).reshape(B, S, 3, H, Dh), 2, 0, 3, 1, 4)
        q, k, v = (qkv[0], qkv[1], qkv[2])
        scores = torch.einsum('bhqd,bhkd->bhqk', q, k) * Dh ** (-0.5)
        idx = torch.arange(S)
        mask = (idx[:, None] - idx[None, :] >= 0) & (idx[:, None] - idx[None, :] < W)
        scores = torch.where(mask[None, None], scores, -1000000000.0)
        p = _softmax(scores, axis=-1)
        o = torch.einsum('bhqk,bhkd->bhqd', p, v)
        return (lambda x, *d: x.permute(*d))(o, 0, 2, 1, 3).reshape(B, S, D) @ wo

    def _B_ref(x, w_gate, w_up, w_down):
        g = torch.einsum('bsd,df->bsf', x, w_gate)
        u = torch.einsum('bsd,df->bsf', x, w_up)
        h = _gelu(g) * u
        return torch.einsum('bsf,fd->bsd', h, w_down)
    x = A_x
    mod = (_silu(c) @ w_mod).reshape(c.shape[0], 6, 1, -1)
    sa, ca, ga, sb, cb, gb = (mod[:, 0].clone(), mod[:, 1].clone(), mod[:, 2].clone(), mod[:, 3].clone(), mod[:, 4].clone(), mod[:, 5].clone())
    h = _layernorm(x, axis=-1) * (1 + ca) + sa
    x = x + ga * _A_ref(h, A_wqkv, A_wo)
    h = _layernorm(x, axis=-1) * (1 + cb) + sb
    x = x + gb * _B_ref(h, B_w_gate, B_w_up, B_w_down)
    return x
```

```python
import struct
import sys

NAME = "adaLN_cond__sliding_block__glu_gated_geglu__prompt"

WS_MOD = 0x0
WS_WQKV = 0x100000
WS_WO = 0x300000
WS_WGU = 0x400000
WS_WD = 0x800000
WS_Q = 0xA00000
WS_K = 0xC00000
WS_VT = 0xE00000
WS_OP = 0x1000000
WS_X2 = 0x1200000
WS_HH = 0x1400000
WS_SIZE = 0x1C00000

KA_X, KA_WQKV, KA_WO, KA_BX, KA_WG, KA_WU, KA_WD, KA_C, KA_WMOD, KA_OUT, KA_DBG, KA_WS = [8 * i for i in range(12)]


def f32bits(x):
    return struct.unpack("<I", struct.pack("<f", x))[0]


class Asm:
    def __init__(self):
        self.lines = []
        self.uid = 0

    def __call__(self, s):
        self.lines.append("    " + s)

    def label(self, l):
        self.lines.append(l + ":")

    def newlabel(self, p="L"):
        self.uid += 1
        return f"{p}_{self.uid}"

    def raw(self, s):
        self.lines.append(s)

    def nop(self, n):
        while n > 0:
            k = min(n, 16)
            self(f"s_nop {k - 1}")
            n -= k

    def srd(self, d, b, nbytes):
        self(f"s_mov_b32 s{d}, s{b}")
        self(f"s_and_b32 s{d + 1}, s{b + 1}, 0xffff")
        self(f"s_mov_b32 s{d + 2}, {nbytes:#x}")
        self(f"s_mov_b32 s{d + 3}, 0x00020000")

    def kernel_begin(self, name):
        self.raw(f".globl {name}")
        self.raw(".p2align 8")
        self.raw(f".type {name},@function")
        self.label(name)

    def text(self):
        return "\n".join(self.lines) + "\n"


def kd(name, vgpr, agpr, sgpr=102):
    acc = (vgpr + 3) // 4 * 4
    nfv = acc + agpr if agpr else vgpr
    return f""".p2align 6
.amdhsa_kernel {name}
  .amdhsa_next_free_vgpr {nfv}
  .amdhsa_next_free_sgpr {sgpr}
  .amdhsa_accum_offset {acc}
  .amdhsa_group_segment_fixed_size 0
  .amdhsa_kernarg_size 96
  .amdhsa_user_sgpr_count 2
  .amdhsa_user_sgpr_kernarg_segment_ptr 1
  .amdhsa_system_sgpr_workgroup_id_x 1
.end_amdhsa_kernel
"""


def vr(b, n=4):
    return f"v[{b}:{b + n - 1}]"


def ar(b, n=4):
    return f"a[{b}:{b + n - 1}]"


def round_bf16_f32(a, dst, src, tmp=None):
    a(f"v_cvt_pk_bf16_f32 {dst}, {src}, {src}")
    a(f"v_lshlrev_b32 {dst}, 16, {dst}")


def gen_k0(a):
    name = "k0_prep_kernel"
    a.kernel_begin(name)
    L_end = "k0_end"
    a("s_cmp_ge_u32 s2, 224")
    a(f"s_cbranch_scc1 {L_end}")
    a("s_load_dwordx4 s[4:7], s[0:1], 8")
    a("s_load_dwordx4 s[8:11], s[0:1], 32")
    a("s_load_dwordx2 s[12:13], s[0:1], 48")
    a("s_load_dwordx4 s[16:19], s[0:1], 56")
    a("s_load_dwordx2 s[14:15], s[0:1], 88")
    a("v_lshrrev_b32 v1, 6, v0")
    a("v_and_b32 v2, 63, v0")
    a("s_nop 0")
    a("v_readfirstlane_b32 s3, v1")
    a("v_and_b32 v3, 15, v2")
    a("v_lshrrev_b32 v4, 4, v2")
    a("s_waitcnt lgkmcnt(0)")
    a.srd(40, 14, WS_SIZE)
    a("s_cmp_lt_u32 s2, 21")
    a("s_cbranch_scc1 k0_mod")
    a("s_sub_u32 s20, s2, 21")
    a("s_lshl_b32 s20, s20, 3")
    a("s_add_u32 s20, s20, s3")
    a("s_mov_b32 s60, 0x05040100")
    a("s_mov_b32 s61, 0x07060302")
    a("v_lshrrev_b32 v5, 3, v3")
    a("v_and_b32 v6, 1, v3")
    a("v_bfe_u32 v7, v3, 1, 2")
    a("v_lshlrev_b32 v7, 6, v7")
    a("v_lshl_add_u32 v7, v4, 8, v7")
    a("v_lshl_add_u32 v7, v6, 10, v7")
    a("v_lshlrev_b32 v9, 3, v3")
    a("v_mov_b32 v18, 0x7fffffff")
    a("s_cmp_lt_u32 s20, 336")
    a("s_cbranch_scc1 k0_pk_qkv")
    a("s_cmp_lt_u32 s20, 448")
    a("s_cbranch_scc1 k0_pk_wo")
    a("s_cmp_lt_u32 s20, 840")
    a("s_cbranch_scc1 k0_pk_wg")
    a("s_cmp_lt_u32 s20, 1232")
    a("s_cbranch_scc1 k0_pk_wu")
    a("s_branch k0_pk_wd")

    def divconst(dst_q, dst_r, src, d, tmp):
        m = (1 << 20) // d + 1
        a(f"s_mul_i32 s{tmp}, s{src}, {m}")
        a(f"s_lshr_b32 s{dst_q}, s{tmp}, 20")
        a(f"s_mul_i32 s{tmp}, s{dst_q}, {d}")
        a(f"s_sub_u32 s{dst_r}, s{src}, s{tmp}")

    def pack_body(rs, alt_hi=False):
        for j in range(8):
            a(f"s_mov_b32 s{50 + j}, {j * rs}")
        for j in range(8):
            vo = 14 if (alt_hi and j >= 4) else 10
            a(f"buffer_load_dwordx2 {vr(20 + 2 * j, 2)}, v{vo}, s[44:47], s{50 + j} offen")
        for jj in range(4):
            a(f"s_waitcnt vmcnt({6 - 2 * jj})")
            for e in range(4):
                r0 = 20 + 4 * jj + (e >> 1)
                r1 = r0 + 2
                a(f"v_perm_b32 v{40 + 4 * e + jj}, v{r1}, v{r0}, s{60 + (e & 1)}")
        for e in range(4):
            a(f"buffer_store_dwordx4 {vr(40 + 4 * e)}, v12, s[40:43], s30 offen offset:{e * 16}")
        a(f"s_branch {L_end}")

    a.label("k0_pk_qkv")
    a.srd(44, 4, 448 * 1344 * 2)
    divconst(21, 22, 20, 24, 23)
    a("s_lshr_b32 s24, s22, 3")
    a("s_and_b32 s25, s22, 7")
    a("s_mul_i32 s24, s24, 896")
    a("s_mul_i32 s25, s25, 112")
    a("s_add_u32 s24, s24, s25")
    a("s_lshl_b32 s26, s21, 5")
    a("v_lshlrev_b32 v8, 3, v4")
    a("v_add_u32 v8, s26, v8")
    a("s_mov_b32 s27, 2688")
    a("v_mul_lo_u32 v8, v8, s27")
    a("v_and_b32 v11, 7, v3")
    a("v_lshlrev_b32 v10, 3, v11")
    a("v_mul_u32_u24 v13, 56, v5")
    a("v_add3_u32 v10, v10, v13, v8")
    a("v_add_u32 v10, s24, v10")
    a("v_cmp_eq_u32 vcc, 7, v11")
    a("v_lshrrev_b32 v12, 2, v3")
    a("v_mul_u32_u24 v12, 14336, v12")
    a("v_cndmask_b32 v10, v10, v18, vcc")
    a("v_and_b32 v13, 3, v3")
    a("v_lshlrev_b32 v13, 6, v13")
    a("v_lshl_add_u32 v13, v4, 8, v13")
    a("v_add_u32 v12, v12, v13")
    a("s_mul_i32 s30, s22, 56")
    a("s_add_u32 s30, s30, s21")
    a("s_lshl_b32 s30, s30, 10")
    a(f"s_add_u32 s30, s30, {WS_WQKV:#x}")
    pack_body(2688)

    a.label("k0_pk_wo")
    a.srd(44, 6, 448 * 448 * 2)
    a("s_sub_u32 s20, s20, 336")
    divconst(21, 22, 20, 7, 23)
    a("s_mul_i32 s26, s21, 28")
    a("v_lshlrev_b32 v8, 3, v4")
    a("v_add_u32 v8, s26, v8")
    a("s_mov_b32 s27, 896")
    a("v_mul_lo_u32 v8, v8, s27")
    a("s_lshl_b32 s24, s22, 7")
    a("v_add3_u32 v10, v8, v9, s24")
    a("v_cmp_eq_u32 vcc, 3, v4")
    a("v_lshl_add_u32 v12, v5, 11, v7")
    a("s_lshl_b32 s30, s22, 4")
    a("v_cndmask_b32 v14, v10, v18, vcc")
    a("s_add_u32 s30, s30, s21")
    a("s_lshl_b32 s30, s30, 12")
    a(f"s_add_u32 s30, s30, {WS_WO:#x}")
    pack_body(896, alt_hi=True)

    for mat, lab, base, ptr in ((0, "k0_pk_wg", 448, 8), (1, "k0_pk_wu", 840, 10)):
        a.label(lab)
        a.srd(44, ptr, 448 * 1792 * 2)
        a(f"s_sub_u32 s20, s20, {base}")
        divconst(21, 22, 20, 28, 23)
        a("s_lshl_b32 s26, s21, 5")
        a("v_lshlrev_b32 v8, 3, v4")
        a("v_add_u32 v8, s26, v8")
        a("s_mov_b32 s27, 3584")
        a("v_mul_lo_u32 v8, v8, s27")
        a("s_lshl_b32 s24, s22, 7")
        a("v_add3_u32 v10, v8, v9, s24")
        a("v_mul_u32_u24 v12, 57344, v5")
        a("v_add_u32 v12, v12, v7")
        a("s_mul_i32 s30, s22, 28")
        a("s_add_u32 s30, s30, s21")
        a("s_lshl_b32 s30, s30, 12")
        a(f"s_add_u32 s30, s30, {WS_WGU + mat * 2048:#x}")
        pack_body(3584)

    a.label("k0_pk_wd")
    a.srd(44, 12, 1792 * 448 * 2)
    a("s_sub_u32 s20, s20, 1232")
    divconst(21, 22, 20, 7, 23)
    a("s_lshl_b32 s26, s21, 5")
    a("v_lshlrev_b32 v8, 3, v4")
    a("v_add_u32 v8, s26, v8")
    a("s_mov_b32 s27, 896")
    a("v_mul_lo_u32 v8, v8, s27")
    a("s_lshl_b32 s24, s22, 7")
    a("v_add3_u32 v10, v8, v9, s24")
    a("v_lshl_add_u32 v12, v5, 11, v7")
    a("s_mul_i32 s30, s22, 56")
    a("s_add_u32 s30, s30, s21")
    a("s_lshl_b32 s30, s30, 12")
    a(f"s_add_u32 s30, s30, {WS_WD:#x}")
    pack_body(896)

    a.label("k0_mod")
    a.srd(44, 16, 896)
    a.srd(48, 18, 448 * 2688 * 2)
    a("s_mul_i32 s20, s3, 56")
    a("v_add_u32 v5, s20, v2")
    a("v_lshlrev_b32 v5, 1, v5")
    a("buffer_load_ushort v6, v5, s[44:47], 0 offen")
    a("s_mul_i32 s21, s20, 5376")
    a("s_lshl_b32 s22, s2, 8")
    a("s_add_u32 s21, s21, s22")
    a("v_lshlrev_b32 v7, 2, v2")
    for r in range(56):
        a(f"buffer_load_dword v{20 + r}, v7, s[48:51], s21 offen")
        if r != 55:
            a("s_add_u32 s21, s21, 5376")
    a("s_waitcnt vmcnt(56)")
    a("v_lshlrev_b32 v6, 16, v6")
    a("v_mul_f32 v8, 0xbfb8aa3b, v6")
    a("v_exp_f32 v8, v8")
    a("s_nop 0")
    a("v_add_f32 v8, 1.0, v8")
    a("v_rcp_f32 v8, v8")
    a("s_nop 0")
    a("v_mul_f32 v8, v6, v8")
    round_bf16_f32(a, "v8", "v8")
    a("s_nop 0")
    a("v_mov_b32 v10, 0")
    a("v_mov_b32 v11, 0")
    a("v_mov_b32 v12, 0")
    a("v_mov_b32 v13, 0")
    a("s_waitcnt vmcnt(0)")
    for b in range(2):
        for r in range(28):
            a(f"v_readlane_b32 s{56 + r}, v8, {b * 28 + r}")
        a("s_nop 1")
        for r in range(28):
            rr = b * 28 + r
            acc = 10 + 2 * (r & 1)
            a(f"v_lshlrev_b32 v14, 16, v{20 + rr}")
            a(f"v_and_b32 v15, 0xffff0000, v{20 + rr}")
            a(f"v_fmac_f32 v{acc}, s{56 + r}, v14")
            a(f"v_fmac_f32 v{acc + 1}, s{56 + r}, v15")
    a("v_add_f32 v10, v10, v12")
    a("v_add_f32 v11, v11, v13")
    a("s_lshl_b32 s23, s3, 9")
    a("v_lshlrev_b32 v16, 3, v2")
    a("v_add_u32 v16, s23, v16")
    a("ds_write_b64 v16, v[10:11]")
    a("s_waitcnt lgkmcnt(0)")
    a("s_barrier")
    a("s_cmp_ge_u32 s3, 2")
    a(f"s_cbranch_scc1 {L_end}")
    a("v_lshlrev_b32 v16, 2, v0")
    for w in range(8):
        a(f"ds_read_b32 v{20 + w}, v16 offset:{w * 512}")
    a("s_waitcnt lgkmcnt(0)")
    a("v_add_f32 v20, v20, v21")
    a("v_add_f32 v22, v22, v23")
    a("v_add_f32 v24, v24, v25")
    a("v_add_f32 v26, v26, v27")
    a("v_add_f32 v20, v20, v22")
    a("v_add_f32 v24, v24, v26")
    a("v_add_f32 v20, v20, v24")
    round_bf16_f32(a, "v20", "v20")
    a("v_add_f32 v21, 1.0, v20")
    round_bf16_f32(a, "v21", "v21")
    a("s_lshl_b32 s24, s2, 7")
    a("v_add_u32 v22, s24, v0")
    a("v_subrev_u32 v23, 448, v22")
    a("v_subrev_u32 v24, 1792, v22")
    a("v_min_u32 v23, v23, v24")
    a("v_cmp_gt_u32 vcc, 448, v23")
    a("s_nop 1")
    a("v_cndmask_b32 v20, v20, v21, vcc")
    a("v_lshlrev_b32 v22, 2, v22")
    a("buffer_store_dword v20, v22, s[40:43], 0 offen")
    a.label(L_end)
    a("s_endpgm")
    return kd(name, 80, 0)


def ln_stage_mod(a, srd_ws, mod_off, lds_mod_sgpr, vt0, vlane16):
    for r in range(4):
        a(f"buffer_load_dwordx4 {vr(vt0 + 4 * r)}, {vlane16}, {srd_ws}, 0 offen offset:{mod_off + r * 1024}")


def ln_mtile(a, vx, vtmp, v_rd_mod, lds_a_vaddr, lds_a_off):
    t = vtmp
    s0, s1, q0, q1 = t, t + 1, t + 2, t + 3
    ones = t + 4
    a(f"v_mov_b32 v{ones}, 0x3f803f80")
    for r in (s0, s1, q0, q1):
        a(f"v_mov_b32 v{r}, 0")
    a("s_nop 0")
    for i in range(56):
        x = vx + i
        s = s0 if (i & 1) == 0 else s1
        q = q0 if (i & 1) == 0 else q1
        a(f"v_dot2_f32_bf16 v{s}, v{x}, v{ones}, v{s}")
        a(f"v_dot2_f32_bf16 v{q}, v{x}, v{x}, v{q}")
    a.nop(3)
    a(f"v_add_f32 v{s0}, v{s0}, v{s1}")
    a(f"v_add_f32 v{q0}, v{q0}, v{q1}")
    for op in ("v_permlane16_swap_b32", "v_permlane32_swap_b32"):
        a(f"v_mov_b32 v{s1}, v{s0}")
        a(f"v_mov_b32 v{q1}, v{q0}")
        a.nop(2)
        a(f"{op} v{s0}, v{s1}")
        a(f"{op} v{q0}, v{q1}")
        a.nop(2)
        a(f"v_add_f32 v{s0}, v{s0}, v{s1}")
        a(f"v_add_f32 v{q0}, v{q0}, v{q1}")
    inv = f32bits(1.0 / 448.0)
    mean, var = t + 5, t + 6
    a(f"v_mul_f32 v{mean}, {inv:#x}, v{s0}")
    a(f"v_mul_f32 v{var}, {inv:#x}, v{q0}")
    a(f"v_fma_f32 v{var}, -v{mean}, v{mean}, v{var}")
    a(f"v_max_f32 v{var}, 0, v{var}")
    round_bf16_f32(a, f"v{mean}", f"v{mean}")
    round_bf16_f32(a, f"v{var}", f"v{var}")
    a(f"v_add_f32 v{var}, {f32bits(1e-5):#x}, v{var}")
    round_bf16_f32(a, f"v{var}", f"v{var}")
    a(f"v_sqrt_f32 v{var}, v{var}")
    a("s_nop 0")
    round_bf16_f32(a, f"v{var}", f"v{var}")
    rs = t + 8
    a(f"v_rcp_f32 v{rs}, v{var}")
    a("s_nop 0")
    a(f"v_mov_b32 v{rs + 1}, v{rs}")
    a(f"v_mul_f32 v{rs + 2}, v{mean}, v{rs}")
    a(f"v_sub_f32 v{rs + 2}, 0, v{rs + 2}")
    a(f"v_mov_b32 v{rs + 3}, v{rs + 2}")
    sv, cv, yv, ov = t + 12, t + 20, t + 28, t + 36
    for ks in range(14):
        a(f"ds_read_b128 {vr(sv)}, {v_rd_mod} offset:{ks * 128}")
        a(f"ds_read_b128 {vr(sv + 4)}, {v_rd_mod} offset:{ks * 128 + 16}")
        a(f"ds_read_b128 {vr(cv)}, {v_rd_mod} offset:{1792 + ks * 128}")
        a(f"ds_read_b128 {vr(cv + 4)}, {v_rd_mod} offset:{1792 + ks * 128 + 16}")
        for d in range(4):
            x = vx + 4 * ks + d
            a(f"v_lshlrev_b32 v{yv + 2 * d}, 16, v{x}")
            a(f"v_and_b32 v{yv + 2 * d + 1}, 0xffff0000, v{x}")
        for d in range(4):
            a(f"v_pk_fma_f32 {vr(yv + 2 * d, 2)}, {vr(yv + 2 * d, 2)}, {vr(rs, 2)}, {vr(rs + 2, 2)}")
        a("s_waitcnt lgkmcnt(0)")
        for d in range(4):
            a(f"v_pk_fma_f32 {vr(yv + 2 * d, 2)}, {vr(yv + 2 * d, 2)}, {vr(cv + 2 * d, 2)}, {vr(sv + 2 * d, 2)}")
        for d in range(4):
            a(f"v_cvt_pk_bf16_f32 v{ov + d}, v{yv + 2 * d}, v{yv + 2 * d + 1}")
        a(f"ds_write_b128 {lds_a_vaddr}, {vr(ov)} offset:{lds_a_off + ks * 1024}")
        a("s_waitcnt lgkmcnt(0)")


def gen_k1(a):
    name = "k1_qkv_kernel"
    a.kernel_begin(name)
    L_end = "k1_end"
    a("s_cmp_ge_u32 s2, 256")
    a(f"s_cbranch_scc1 {L_end}")
    a("s_load_dwordx2 s[4:5], s[0:1], 0")
    a("s_load_dwordx2 s[6:7], s[0:1], 88")
    a("v_lshrrev_b32 v1, 6, v0")
    a("v_and_b32 v2, 63, v0")
    a("s_nop 0")
    a("v_readfirstlane_b32 s3, v1")
    a("v_and_b32 v3, 15, v2")
    a("v_lshrrev_b32 v4, 4, v2")
    a("v_lshlrev_b32 v5, 4, v2")
    a("s_and_b32 s8, s2, 7")
    a("s_lshr_b32 s9, s2, 3")
    a("s_waitcnt lgkmcnt(0)")
    a.srd(12, 4, 2048 * 896)
    a.srd(16, 6, WS_SIZE)
    a("s_lshl_b32 s10, s9, 6")
    a("s_lshl_b32 s11, s3, 4")
    a("s_add_u32 s10, s10, s11")
    a("v_add_u32 v6, s10, v3")
    a("s_mov_b32 s20, 896")
    a("v_mul_lo_u32 v6, v6, s20")
    a("v_lshlrev_b32 v7, 4, v4")
    a("v_add_u32 v6, v6, v7")
    VX = 64
    for ks in range(14):
        a(f"buffer_load_dwordx4 {vr(VX + 4 * ks)}, v6, s[12:15], 0 offen offset:{ks * 64}")
    VM = 120
    ln_stage_mod(a, "s[16:19]", WS_MOD + 0, None, VM, "v5")
    a("s_mul_i32 s21, s8, 12")
    a("s_mul_i32 s22, s3, 3")
    a("s_add_u32 s21, s21, s22")
    a("s_mul_i32 s22, s21, 14336")
    a(f"s_add_u32 s22, s22, {WS_WQKV:#x}")
    a("s_add_u32 s23, s22, 14336")
    a("s_add_u32 s24, s23, 14336")
    for ks in range(14):
        if ks and ks % 4 == 0:
            for j in range(3):
                a(f"s_add_u32 s{22 + j}, s{22 + j}, 4096")
        for j in range(3):
            a(f"buffer_load_dwordx4 {ar((ks * 3 + j) * 4)}, v5, s[16:19], s{22 + j} offen offset:{(ks % 4) * 1024}")
    LDS_MOD = 57344
    a("s_lshl_b32 s25, s3, 12")
    a(f"s_add_u32 s25, s25, {LDS_MOD}")
    a("v_add_u32 v8, s25, v5")
    a("v_lshlrev_b32 v9, 5, v4")
    a("v_add_u32 v9, s25, v9")
    a("s_mul_i32 s26, s3, 14336")
    a("v_add_u32 v10, s26, v5")
    a("s_waitcnt vmcnt(42)")
    for r in range(4):
        a(f"ds_write_b128 v8, {vr(VM + 4 * r)} offset:{r * 1024}")
    a("s_waitcnt lgkmcnt(0)")
    ln_mtile(a, VX, 16, "v9", "v10", 0)
    a("s_barrier")
    a("s_cmp_lt_u32 s21, 63")
    a("s_cbranch_scc1 k1_v0")
    a("s_cmp_eq_u32 s21, 63")
    a("s_cbranch_scc1 k1_v1")
    a("s_branch k1_v2")
    ACC = 64
    AF = 112
    for var, types in enumerate((("qk", "qk", "qk"), ("qk", "v", "v"), ("v", "v", "v"))):
        a.label(f"k1_v{var}")
        for mt in range(4):
            a(f"ds_read_b128 {vr(AF + 4 * mt)}, v5 offset:{mt * 14336}")
        for ks in range(14):
            cur = AF + 16 * (ks & 1)
            nxt = AF + 16 * ((ks + 1) & 1)
            if ks < 13:
                for mt in range(4):
                    a(f"ds_read_b128 {vr(nxt + 4 * mt)}, v5 offset:{mt * 14336 + (ks + 1) * 1024}")
                a(f"s_waitcnt vmcnt({42 - 3 * (ks + 1)}) lgkmcnt(4)")
            else:
                a("s_waitcnt vmcnt(0) lgkmcnt(0)")
            for mt in range(4):
                for j in range(3):
                    acc = vr(ACC + (mt * 3 + j) * 4)
                    c = "0" if ks == 0 else acc
                    b = ar((ks * 3 + j) * 4)
                    x = vr(cur + 4 * mt)
                    if types[j] == "qk":
                        a(f"v_mfma_f32_16x16x32_bf16 {acc}, {b}, {x}, {c}")
                    else:
                        a(f"v_mfma_f32_16x16x32_bf16 {acc}, {x}, {b}, {c}")
        a("s_lshl_b32 s30, s9, 12")
        a("v_lshlrev_b32 v11, 6, v3")
        a("v_lshlrev_b32 v12, 3, v4")
        a("v_add3_u32 v11, v11, v12, s30")
        a("v_and_b32 v12, 1, v4")
        a("v_lshlrev_b32 v12, 5, v12")
        a("v_add_u32 v12, v12, v3")
        a("v_lshlrev_b32 v12, 4, v12")
        a("v_lshrrev_b32 v13, 1, v4")
        a("v_lshlrev_b32 v13, 3, v13")
        a("v_add3_u32 v12, v12, v13, s30")
        a("v_cmp_eq_u32 vcc, 12, v3")
        a("v_mov_b32 v14, 0x3f803f80")
        for j in range(3):
            a(f"s_add_u32 s31, s21, {j}")
            a("s_and_b32 s32, s31, 1")
            a("s_and_b32 s33, s31, 31")
            a("s_lshr_b32 s33, s33, 1")
            a("s_lshl_b32 s33, s33, 17")
            if types[j] == "qk":
                a("s_lshr_b32 s34, s31, 5")
                a("s_lshl_b32 s34, s34, 21")
                a("s_lshl_b32 s32, s32, 5")
                a("s_add_u32 s33, s33, s34")
                a("s_add_u32 s33, s33, s32")
                a(f"s_add_u32 s{36 + j}, s33, {WS_Q:#x}")
            else:
                a("s_lshl_b32 s35, s32, 8")
                a("s_add_u32 s33, s33, s35")
                a(f"s_add_u32 s{36 + j}, s33, {WS_VT:#x}")
                a(f"s_mov_b32 s{40 + j}, s32")
        a.nop(4)
        for mt in range(4):
            for j in range(3):
                acc = ACC + (mt * 3 + j) * 4
                o = 16 + (mt * 3 + j) * 2
                a(f"v_cvt_pk_bf16_f32 v{o}, v{acc}, v{acc + 1}")
                a(f"v_cvt_pk_bf16_f32 v{o + 1}, v{acc + 2}, v{acc + 3}")
        for j in range(3):
            if types[j] == "v":
                lab = a.newlabel("k1_noones")
                a(f"s_cmp_eq_u32 s{40 + j}, 0")
                a(f"s_cbranch_scc1 {lab}")
                for mt in range(4):
                    o = 16 + (mt * 3 + j) * 2
                    a(f"v_cndmask_b32 v{o}, v{o}, v14, vcc")
                    a(f"v_cndmask_b32 v{o + 1}, v{o + 1}, v14, vcc")
                a.label(lab)
        for mt in range(4):
            for j in range(3):
                o = 16 + (mt * 3 + j) * 2
                if types[j] == "qk":
                    a(f"buffer_store_dwordx2 {vr(o, 2)}, v11, s[16:19], s{36 + j} offen offset:{mt * 1024}")
                else:
                    a(f"buffer_store_dwordx2 {vr(o, 2)}, v12, s[16:19], s{36 + j} offen offset:{(mt >> 1) * 2048 + (mt & 1) * 1024}")
        a(f"s_branch {L_end}")
    a.label(L_end)
    a("s_endpgm")
    return kd(name, 144, 168)


def gen_k2(a):
    name = "k2_attn_kernel"
    a.kernel_begin(name)
    L_end = "k2_end"
    a("s_cmp_ge_u32 s2, 256")
    a(f"s_cbranch_scc1 {L_end}")
    a("s_load_dwordx2 s[6:7], s[0:1], 88")
    a("v_lshrrev_b32 v1, 6, v0")
    a("v_and_b32 v2, 63, v0")
    a("s_nop 0")
    a("v_readfirstlane_b32 s3, v1")
    a("v_and_b32 v3, 31, v2")
    a("v_lshrrev_b32 v4, 5, v2")
    a("v_lshlrev_b32 v5, 4, v2")
    a("v_lshlrev_b32 v6, 6, v3")
    a("v_lshlrev_b32 v7, 4, v4")
    a("v_add_u32 v6, v6, v7")
    a("s_and_b32 s8, s2, 7")
    a("s_lshl_b32 s8, s8, 1")
    a("s_lshr_b32 s9, s2, 3")
    a("s_and_b32 s10, s9, 1")
    a("s_add_u32 s8, s8, s10")
    a("s_lshr_b32 s9, s2, 4")
    a("s_lshl_b32 s9, s9, 2")
    a("s_add_u32 s9, s9, s3")
    a("s_waitcnt lgkmcnt(0)")
    a.srd(16, 6, WS_SIZE)
    a("s_lshl_b32 s10, s8, 17")
    a("s_lshl_b32 s11, s9, 11")
    a("s_add_u32 s12, s10, s11")
    a(f"s_add_u32 s12, s12, {WS_Q:#x}")
    QF = 8
    a(f"buffer_load_dwordx4 {vr(QF)}, v6, s[16:19], s12 offen")
    a(f"buffer_load_dwordx4 {vr(QF + 4)}, v6, s[16:19], s12 offen offset:32")
    for tt in range(9):
        a(f"s_add_i32 s{20 + tt}, s9, {tt - 8}")
        a(f"s_max_i32 s{20 + tt}, s{20 + tt}, 0")
        a(f"s_lshl_b32 s{20 + tt}, s{20 + tt}, 11")
        a(f"s_add_u32 s{20 + tt}, s{20 + tt}, s10")
        a(f"s_add_u32 s{30 + tt}, s{20 + tt}, {WS_VT:#x}")
        a(f"s_add_u32 s{20 + tt}, s{20 + tt}, {WS_K:#x}")
    for tt in range(9):
        a(f"buffer_load_dwordx4 {ar(tt * 8)}, v6, s[16:19], s{20 + tt} offen")
        a(f"buffer_load_dwordx4 {ar(tt * 8 + 4)}, v6, s[16:19], s{20 + tt} offen offset:32")
    for tt in range(9):
        a(f"buffer_load_dwordx4 {ar(72 + tt * 8)}, v5, s[16:19], s{30 + tt} offen")
        a(f"buffer_load_dwordx4 {ar(72 + tt * 8 + 4)}, v5, s[16:19], s{30 + tt} offen offset:1024")
    a("s_sub_i32 s13, 8, s9")
    a("s_max_i32 s13, s13, 0")
    MA, MB, MN = 16, 32, 48
    S = 64
    O = 208
    a("v_mov_b32 v224, 0xff800000")
    a("v_mov_b32 v225, 0")
    a("v_lshlrev_b32 v226, 2, v4")
    for r in range(16):
        kk_c = 8 * (r >> 2) + (r & 3)
        a(f"v_add_u32 v227, {kk_c}, v226")
        a("v_cmp_gt_u32 vcc, v227, v3")
        a("s_nop 1")
        a(f"v_cndmask_b32 v{MA + r}, v224, v225, vcc")
        a(f"v_cndmask_b32 v{MB + r}, v225, v224, vcc")
        a(f"v_mov_b32 v{MN + r}, v224")
    a("s_nop 1")
    for tt in range(9):
        a(f"s_waitcnt vmcnt({18 + 2 * (8 - tt)})")
        s = vr(S + 16 * tt, 16)
        c = vr(MA, 16) if tt == 0 else (vr(MB, 16) if tt == 8 else "0")
        if tt < 8:
            li, lj = a.newlabel("k2_inv"), a.newlabel("k2_join")
            a(f"s_cmp_gt_u32 s13, {tt}")
            a(f"s_cbranch_scc1 {li}")
            a(f"v_mfma_f32_32x32x16_bf16 {s}, {ar(tt * 8)}, {vr(QF)}, {c}")
            a(f"s_branch {lj}")
            a.label(li)
            a(f"v_mfma_f32_32x32x16_bf16 {s}, {ar(tt * 8)}, {vr(QF)}, {vr(MN, 16)}")
            a.label(lj)
        else:
            a(f"v_mfma_f32_32x32x16_bf16 {s}, {ar(tt * 8)}, {vr(QF)}, {c}")
        a(f"v_mfma_f32_32x32x16_bf16 {s}, {ar(tt * 8 + 4)}, {vr(QF + 4)}, {s}")
    a.nop(12)
    m0, m1 = 224, 225
    a(f"v_max3_f32 v{m0}, v{S}, v{S + 1}, v{S + 2}")
    a(f"v_max3_f32 v{m1}, v{S + 3}, v{S + 4}, v{S + 5}")
    i = 6
    k = 0
    while i < 144:
        m = m0 if k % 2 == 0 else m1
        a(f"v_max3_f32 v{m}, v{m}, v{S + i}, v{S + i + 1}")
        i += 2
        k += 1
    a(f"v_max_f32 v{m0}, v{m0}, v{m1}")
    a(f"v_mov_b32 v{m1}, v{m0}")
    a.nop(2)
    a(f"v_permlane32_swap_b32 v{m0}, v{m1}")
    a.nop(2)
    a(f"v_max_f32 v{m0}, v{m0}, v{m1}")
    cs = (28 ** -0.5) * 1.4426950408889634
    a(f"s_mov_b32 s14, {f32bits(cs):#x}")
    a(f"v_mul_f32 v{m0}, s14, v{m0}")
    a(f"v_sub_f32 v{m0}, 0, v{m0}")
    for i in range(144):
        a(f"v_fma_f32 v{S + i}, v{S + i}, s14, v{m0}")
    for i in range(144):
        a(f"v_exp_f32 v{S + i}, v{S + i}")
    a("s_nop 0")
    for i in range(72):
        a(f"v_cvt_pk_bf16_f32 v{S + i}, v{S + 2 * i}, v{S + 2 * i + 1}")
    a("s_waitcnt vmcnt(0)")
    a.nop(2)
    first = True
    for tt in range(9):
        for t in range(2):
            c = "0" if first else vr(O, 16)
            first = False
            a(f"v_mfma_f32_32x32x16_bf16 {vr(O, 16)}, {ar(72 + tt * 8 + 4 * t)}, {vr(S + 8 * tt + 4 * t)}, {c}")
    a.nop(12)
    a(f"v_mov_b32 v224, v{O + 12}")
    a(f"v_mov_b32 v225, v{O + 12}")
    a.nop(2)
    a("v_permlane32_swap_b32 v224, v225")
    a.nop(2)
    a("v_rcp_f32 v225, v225")
    a("s_nop 0")
    for r in range(16):
        a(f"v_mul_f32 v{O + r}, v{O + r}, v225")
    for r in range(8):
        a(f"v_cvt_pk_bf16_f32 v{16 + r}, v{O + 2 * r}, v{O + 2 * r + 1}")
    a("v_lshrrev_b32 v226, 4, v3")
    a("v_lshlrev_b32 v226, 14, v226")
    a("v_and_b32 v227, 15, v3")
    a("v_lshlrev_b32 v227, 4, v227")
    a("v_lshlrev_b32 v228, 3, v4")
    a("v_add3_u32 v226, v226, v227, v228")
    a("s_lshl_b32 s15, s9, 15")
    a("s_lshl_b32 s40, s8, 10")
    a("s_add_u32 s15, s15, s40")
    a(f"s_add_u32 s15, s15, {WS_OP:#x}")
    for i in range(4):
        a(f"buffer_store_dwordx2 {vr(16 + 2 * i, 2)}, v226, s[16:19], s15 offen offset:{i * 256}")
    a.label(L_end)
    a("s_endpgm")
    return kd(name, 232, 144)


def gen_gemm_res(a, name, ksw, ks_total, ws_a, ws_b, res_from_x, gate_off, out_to_dout, depth):
    a.kernel_begin(name)
    L_end = name + "_end"
    a("s_cmp_ge_u32 s2, 224")
    a(f"s_cbranch_scc1 {L_end}")
    a("s_load_dwordx2 s[4:5], s[0:1], 0")
    a("s_load_dwordx2 s[6:7], s[0:1], 88")
    a("s_load_dwordx2 s[44:45], s[0:1], 72")
    a("v_lshrrev_b32 v1, 6, v0")
    a("v_and_b32 v2, 63, v0")
    a("s_nop 0")
    a("v_readfirstlane_b32 s3, v1")
    a("v_and_b32 v3, 15, v2")
    a("v_lshrrev_b32 v4, 4, v2")
    a("v_lshlrev_b32 v5, 4, v2")
    a("s_mul_i32 s8, s2, 149797")
    a("s_lshr_b32 s9, s8, 20")
    a("s_mul_i32 s8, s9, 7")
    a("s_sub_u32 s8, s2, s8")
    a("s_waitcnt lgkmcnt(0)")
    a.srd(12, 4, 2048 * 896)
    a.srd(16, 6, WS_SIZE)
    a.srd(48, 44, 2048 * 896)
    a(f"s_mul_i32 s10, s3, {ksw}")
    for mt in range(4):
        a(f"s_lshl_b32 s{20 + mt}, s9, 2")
        a(f"s_add_u32 s{20 + mt}, s{20 + mt}, {mt}")
        a(f"s_mul_i32 s{20 + mt}, s{20 + mt}, {ks_total}")
        a(f"s_add_u32 s{20 + mt}, s{20 + mt}, s10")
        a(f"s_lshl_b32 s{20 + mt}, s{20 + mt}, 10")
        a(f"s_add_u32 s{20 + mt}, s{20 + mt}, {ws_a:#x}")
    a(f"s_mul_i32 s24, s8, {ks_total}")
    a("s_add_u32 s24, s24, s10")
    a("s_lshl_b32 s24, s24, 12")
    a(f"s_add_u32 s24, s24, {ws_b:#x}")

    def issue(ks):
        slot = ks % depth
        base = slot * 32
        if ks and ks % 4 == 0:
            for mt in range(4):
                a(f"s_add_u32 s{20 + mt}, s{20 + mt}, 4096")
        for mt in range(4):
            a(f"buffer_load_dwordx4 {ar(base + 4 * mt)}, v5, s[16:19], s{20 + mt} offen offset:{(ks % 4) * 1024}")
        for t in range(4):
            a(f"buffer_load_dwordx4 {ar(base + 16 + 4 * t)}, v5, s[16:19], s24 offen offset:{t * 1024}")
        a("s_add_u32 s24, s24, 4096")

    ACC = 64
    npre = min(depth, ksw)
    for ks in range(npre):
        issue(ks)
    for ks in range(ksw):
        issued = min(ksw, npre + ks)
        a(f"s_waitcnt vmcnt({8 * (issued - ks - 1)})")
        base = (ks % depth) * 32
        for mt in range(4):
            for t in range(4):
                acc = vr(ACC + (mt * 4 + t) * 4)
                c = "0" if ks == 0 else acc
                a(f"v_mfma_f32_16x16x32_bf16 {acc}, {ar(base + 16 + 4 * t)}, {ar(base + 4 * mt)}, {c}")
        if npre + ks < ksw:
            issue(npre + ks)
    a("s_lshl_b32 s26, s9, 6")
    a("s_lshl_b32 s27, s3, 4")
    a("s_add_u32 s26, s26, s27")
    a("v_add_u32 v6, s26, v3")
    a("s_mov_b32 s27, 896")
    a("v_mul_lo_u32 v6, v6, s27")
    a("v_lshlrev_b32 v7, 4, v4")
    a("s_lshl_b32 s28, s8, 7")
    a("v_add3_u32 v6, v6, v7, s28")
    if res_from_x:
        a(f"buffer_load_dwordx4 {vr(16)}, v6, s[12:15], 0 offen")
        a(f"buffer_load_dwordx4 {vr(20)}, v6, s[12:15], 0 offen offset:64")
    else:
        a(f"s_mov_b32 s29, {WS_X2:#x}")
        a(f"buffer_load_dwordx4 {vr(16)}, v6, s[16:19], s29 offen")
        a(f"buffer_load_dwordx4 {vr(20)}, v6, s[16:19], s29 offen offset:64")
    a("v_lshlrev_b32 v8, 5, v4")
    a("s_lshl_b32 s30, s8, 8")
    a(f"s_add_u32 s30, s30, {WS_MOD + gate_off * 4}")
    for p in range(2):
        a(f"buffer_load_dwordx4 {vr(24 + 8 * p)}, v8, s[16:19], s30 offen offset:{p * 128}")
        a(f"buffer_load_dwordx4 {vr(28 + 8 * p)}, v8, s[16:19], s30 offen offset:{p * 128 + 16}")
    a("s_lshl_b32 s31, s3, 14")
    a("v_add_u32 v9, s31, v5")
    a.nop(8)
    for tile in range(16):
        a(f"ds_write_b128 v9, {vr(ACC + tile * 4)} offset:{tile * 1024}")
    a("s_waitcnt lgkmcnt(0)")
    a("s_barrier")
    a("s_lshl_b32 s31, s3, 12")
    a("v_add_u32 v9, s31, v5")
    R = 128
    for w in range(4):
        for t in range(4):
            a(f"ds_read_b128 {vr(R + (w * 4 + t) * 4)}, v9 offset:{w * 16384 + t * 1024}")
    a("s_waitcnt lgkmcnt(0)")
    for t in range(4):
        for r in range(4):
            d = R + t * 4 + r
            a(f"v_add_f32 v{d}, v{d}, v{R + 16 + t * 4 + r}")
            a(f"v_add_f32 v{R + 32 + t * 4 + r}, v{R + 32 + t * 4 + r}, v{R + 48 + t * 4 + r}")
    for t in range(4):
        for r in range(4):
            d = R + t * 4 + r
            a(f"v_add_f32 v{d}, v{d}, v{R + 32 + t * 4 + r}")
    a("s_waitcnt vmcnt(0)")
    for p in range(2):
        for e in range(0, 8, 2):
            y = R + 8 * p + e
            a(f"v_cvt_pk_bf16_f32 v40, v{y}, v{y + 1}")
            a("v_lshlrev_b32 v42, 16, v40")
            a("v_and_b32 v43, 0xffff0000, v40")
            a(f"v_mul_f32 v42, v42, v{24 + 8 * p + e}")
            a(f"v_mul_f32 v43, v43, v{24 + 8 * p + e + 1}")
            a("v_cvt_pk_bf16_f32 v40, v42, v43")
            a("v_lshlrev_b32 v42, 16, v40")
            a("v_and_b32 v43, 0xffff0000, v40")
            xr = 16 + 4 * p + e // 2
            a(f"v_lshlrev_b32 v44, 16, v{xr}")
            a(f"v_and_b32 v45, 0xffff0000, v{xr}")
            a("v_add_f32 v42, v42, v44")
            a("v_add_f32 v43, v43, v45")
            a(f"v_cvt_pk_bf16_f32 v{48 + 4 * p + e // 2}, v42, v43")
    if out_to_dout:
        a(f"buffer_store_dwordx4 {vr(48)}, v6, s[48:51], 0 offen")
        a(f"buffer_store_dwordx4 {vr(52)}, v6, s[48:51], 0 offen offset:64")
    else:
        a(f"s_mov_b32 s29, {WS_X2:#x}")
        a(f"buffer_store_dwordx4 {vr(48)}, v6, s[16:19], s29 offen")
        a(f"buffer_store_dwordx4 {vr(52)}, v6, s[16:19], s29 offen offset:64")
    a.label(L_end)
    a("s_endpgm")
    return kd(name, 192, 32 * depth)


def gen_k4(a):
    name = "k4_ffn1_kernel"
    a.kernel_begin(name)
    L_end = "k4_end"
    a("s_cmp_ge_u32 s2, 224")
    a(f"s_cbranch_scc1 {L_end}")
    a("s_load_dwordx2 s[6:7], s[0:1], 88")
    a("v_lshrrev_b32 v1, 6, v0")
    a("v_and_b32 v2, 63, v0")
    a("s_nop 0")
    a("v_readfirstlane_b32 s3, v1")
    a("v_and_b32 v3, 15, v2")
    a("v_lshrrev_b32 v4, 4, v2")
    a("v_lshlrev_b32 v5, 4, v2")
    a("s_mul_i32 s8, s2, 74899")
    a("s_lshr_b32 s9, s8, 20")
    a("s_mul_i32 s8, s9, 14")
    a("s_sub_u32 s8, s2, s8")
    a("s_waitcnt lgkmcnt(0)")
    a.srd(16, 6, WS_SIZE)
    a("s_lshl_b32 s10, s9, 7")
    a("s_lshl_b32 s11, s3, 5")
    a("s_add_u32 s10, s10, s11")
    a("v_add_u32 v6, s10, v3")
    a("s_mov_b32 s20, 896")
    a("v_mul_lo_u32 v6, v6, s20")
    a("v_lshlrev_b32 v7, 4, v4")
    a("v_add_u32 v6, v6, v7")
    a(f"s_mov_b32 s12, {WS_X2:#x}")
    a(f"s_mov_b32 s13, {WS_X2 + 16 * 896:#x}")
    VX = 64
    for mm in range(2):
        for ks in range(14):
            a(f"buffer_load_dwordx4 {vr(VX + 56 * mm + 4 * ks)}, v6, s[16:19], s{12 + mm} offen offset:{ks * 64}")
    VM = 176
    a(f"s_mov_b32 s14, {WS_MOD + 1344 * 4}")
    for r in range(4):
        a(f"buffer_load_dwordx4 {vr(VM + 4 * r)}, v5, s[16:19], s14 offen offset:{r * 1024}")
    a("s_lshl_b32 s21, s8, 2")
    a("s_add_u32 s21, s21, s3")
    a("s_mul_i32 s22, s21, 57344")
    a(f"s_add_u32 s22, s22, {WS_WGU:#x}")

    def issue_b(ks):
        for q in range(4):
            a(f"buffer_load_dwordx4 {ar(ks * 16 + 4 * q)}, v5, s[16:19], s22 offen offset:{q * 1024}")
        a("s_add_u32 s22, s22, 4096")

    NB0 = 7
    for ks in range(NB0):
        issue_b(ks)
    LDS_MOD = 114688
    a("s_lshl_b32 s25, s3, 12")
    a(f"s_add_u32 s25, s25, {LDS_MOD}")
    a("v_add_u32 v8, s25, v5")
    a("v_lshlrev_b32 v9, 5, v4")
    a("v_add_u32 v9, s25, v9")
    a("s_mul_i32 s26, s3, 28672")
    a("v_add_u32 v10, s26, v5")
    a(f"s_waitcnt vmcnt({4 * NB0})")
    for r in range(4):
        a(f"ds_write_b128 v8, {vr(VM + 4 * r)} offset:{r * 1024}")
    a("s_waitcnt lgkmcnt(0)")
    ln_mtile(a, VX, 16, "v9", "v10", 0)
    for ks in range(NB0, 14):
        issue_b(ks)
    ln_mtile(a, VX + 56, 16, "v9", "v10", 14336)
    a("s_barrier")
    ACC = 64
    AF = 192
    a("v_add_u32 v11, 0x10000, v5")
    for mt in range(8):
        off = mt * 14336
        if off >= 65536:
            a(f"ds_read_b128 {vr(AF + 4 * mt)}, v11 offset:{off - 65536}")
        else:
            a(f"ds_read_b128 {vr(AF + 4 * mt)}, v5 offset:{off}")
    for ks in range(14):
        cur = AF + 32 * (ks & 1)
        nxt = AF + 32 * ((ks + 1) & 1)
        if ks < 13:
            for mt in range(8):
                off = mt * 14336 + (ks + 1) * 1024
                if off >= 65536:
                    a(f"ds_read_b128 {vr(nxt + 4 * mt)}, v11 offset:{off - 65536}")
                else:
                    a(f"ds_read_b128 {vr(nxt + 4 * mt)}, v5 offset:{off}")
            a(f"s_waitcnt vmcnt({4 * (13 - ks)}) lgkmcnt(8)")
        else:
            a("s_waitcnt vmcnt(0) lgkmcnt(0)")
        for mt in range(8):
            for q in range(4):
                acc = vr(ACC + (mt * 4 + q) * 4)
                c = "0" if ks == 0 else acc
                a(f"v_mfma_f32_16x16x32_bf16 {acc}, {ar(ks * 16 + 4 * q)}, {vr(cur + 4 * mt)}, {c}")
    a.nop(8)
    k1 = -2.0 * 0.7978845608028654 * 1.4426950408889634
    k2 = k1 * 0.044715
    a(f"v_mov_b32 v16, {f32bits(k1):#x}")
    a(f"v_mov_b32 v17, {f32bits(k1):#x}")
    a(f"v_mov_b32 v18, {f32bits(k2):#x}")
    a(f"v_mov_b32 v19, {f32bits(k2):#x}")
    a("v_mov_b32 v20, 1.0")
    a("v_mov_b32 v21, 1.0")
    a("s_lshl_b32 s30, s9, 3")
    a("s_mul_i32 s30, s30, 56")
    a("s_add_u32 s30, s30, s21")
    a("s_lshl_b32 s30, s30, 10")
    a(f"s_add_u32 s30, s30, {WS_HH:#x}")
    for mt in range(8):
        g0 = ACC + mt * 16
        u0 = g0 + 8
        ob = 40 + 4 * (mt & 1)
        for e in range(0, 8, 2):
            g = g0 + e
            u = u0 + e
            a(f"v_cvt_pk_bf16_f32 v24, v{g}, v{g + 1}")
            a(f"v_cvt_pk_bf16_f32 v25, v{u}, v{u + 1}")
            a("v_lshlrev_b32 v26, 16, v24")
            a("v_and_b32 v27, 0xffff0000, v24")
            a("v_lshlrev_b32 v28, 16, v25")
            a("v_and_b32 v29, 0xffff0000, v25")
            a("v_pk_mul_f32 v[30:31], v[26:27], v[26:27]")
            a("v_pk_fma_f32 v[30:31], v[30:31], v[18:19], v[16:17]")
            a("v_pk_mul_f32 v[30:31], v[30:31], v[26:27]")
            a("v_exp_f32 v30, v30")
            a("v_exp_f32 v31, v31")
            a("s_nop 0")
            a("v_pk_add_f32 v[30:31], v[30:31], v[20:21]")
            a("v_rcp_f32 v30, v30")
            a("v_rcp_f32 v31, v31")
            a("s_nop 0")
            a("v_pk_mul_f32 v[30:31], v[30:31], v[26:27]")
            a("v_cvt_pk_bf16_f32 v24, v30, v31")
            a("v_lshlrev_b32 v30, 16, v24")
            a("v_and_b32 v31, 0xffff0000, v24")
            a("v_pk_mul_f32 v[30:31], v[30:31], v[28:29]")
            a(f"v_cvt_pk_bf16_f32 v{ob + e // 2}, v30, v31")
        a(f"buffer_store_dwordx4 {vr(ob)}, v5, s[16:19], s30 offen")
        a("s_add_u32 s30, s30, 57344")
    a.label(L_end)
    a("s_endpgm")
    return kd(name, 256, 224)


def main():
    a = Asm()
    hdr = open("cdna_kernels/" + NAME + ".s.ref").read().split("\n")
    head = [l for l in hdr if l.startswith(";") and "@launch" not in l and "Override" not in l and "grid=ceil" not in l]
    out = "\n".join(head) + "\n"
    out += "; @launch kernel=k0_prep_kernel grid=(224,1,1) block=(512,1,1) lds=4096\n"
    out += "; @launch kernel=k1_qkv_kernel grid=(256,1,1) block=(256,1,1) lds=73728\n"
    out += "; @launch kernel=k2_attn_kernel grid=(256,1,1) block=(256,1,1) lds=0\n"
    out += "; @launch kernel=k3_wo_kernel grid=(224,1,1) block=(256,1,1) lds=65536\n"
    out += "; @launch kernel=k4_ffn1_kernel grid=(224,1,1) block=(256,1,1) lds=131072\n"
    out += "; @launch kernel=k5_ffn2_kernel grid=(224,1,1) block=(256,1,1) lds=65536\n"
    out += '.amdgcn_target "amdgcn-amd-amdhsa--gfx950"\n.text\n'
    kds = []
    kds.append(gen_k0(a))
    kds.append(gen_k1(a))
    kds.append(gen_k2(a))
    kds.append(gen_gemm_res(a, "k3_wo_kernel", 4, 16, WS_OP, WS_WO, True, 896, False, 4))
    kds.append(gen_k4(a))
    kds.append(gen_gemm_res(a, "k5_ffn2_kernel", 14, 56, WS_HH, WS_WD, False, 2240, True, 7))
    out += a.text()
    out += '.section .rodata,"a"\n'
    out += "".join(kds)
    open("cdna_kernels/" + NAME + ".s", "w").write(out)


if __name__ == "__main__":
    main()
```

```python
import struct
import sys

STAMPS = len(sys.argv) > 1 and sys.argv[1] == "stamps"
NAME = "adaLN_cond__sliding_block__glu_gated_geglu__prompt"

WS_MOD = 0x0
WS_WQKV = 0x100000
WS_WO = 0x300000
WS_WGU = 0x400000
WS_WD = 0x800000
WS_Q = 0xA00000
WS_K = 0xC00000
WS_VT = 0xE00000
WS_OP = 0x1000000
WS_X2 = 0x1200000
WS_HH = 0x1400000
WS_XH = 0x1C00000
WS_ST = 0x1E00000
WS_SIZE = 0x2000000

KA_X, KA_WQKV, KA_WO, KA_BX, KA_WG, KA_WU, KA_WD, KA_C, KA_WMOD, KA_OUT, KA_DBG, KA_WS = [8 * i for i in range(12)]


def f32bits(x):
    return struct.unpack("<I", struct.pack("<f", x))[0]


class Asm:
    def __init__(self):
        self.lines = []
        self.uid = 0

    def __call__(self, s):
        self.lines.append("    " + s)

    def label(self, l):
        self.lines.append(l + ":")

    def newlabel(self, p="L"):
        self.uid += 1
        return f"{p}_{self.uid}"

    def raw(self, s):
        self.lines.append(s)

    def nop(self, n):
        while n > 0:
            k = min(n, 16)
            self(f"s_nop {k - 1}")
            n -= k

    def srd(self, d, b, nbytes):
        self(f"s_mov_b32 s{d}, s{b}")
        self(f"s_and_b32 s{d + 1}, s{b + 1}, 0xffff")
        self(f"s_mov_b32 s{d + 2}, {nbytes:#x}")
        self(f"s_mov_b32 s{d + 3}, 0x00020000")

    def stamp(self, i):
        if not STAMPS:
            return
        self(f"s_memtime s[{70 + 2 * i}:{71 + 2 * i}]")
        self("s_waitcnt lgkmcnt(0)")

    def stamp_flush(self, srd, n, kidx, wsh=2):
        if not STAMPS:
            return
        if wsh == 3:
            self("s_and_b32 s3, s3, 3")
        self("s_lshl_b32 s68, s2, 2")
        self("s_add_u32 s68, s68, s3")
        self("s_lshl_b32 s68, s68, 6")
        self(f"s_add_u32 s68, s68, {0x1B00000 + kidx * 0x10000:#x}")
        self("v_mov_b32 v1, 0")
        for i in range(n):
            self(f"v_mov_b32 v2, s{70 + 2 * i}")
            self(f"buffer_store_dword v2, v1, {srd}, s68 offen offset:{i * 4}")
            self("s_nop 1")

    def kernel_begin(self, name):
        self.raw(f".globl {name}")
        self.raw(".p2align 8")
        self.raw(f".type {name},@function")
        self.label(name)

    def t(self, s, tag):
        self.lines.append("    " + s + " ;@T:" + tag)

    def wait(self, *tags):
        self.lines.append("@WAIT " + " ".join(tags))

    def capture(self):
        old = self.lines
        self.lines = []
        return old

    def release(self, old):
        cap = self.lines
        self.lines = old
        return cap

    def text(self):
        out = []
        vm, ds = [], []
        snaps = {}
        for l in self.lines:
            st = l.strip()
            if st.startswith("@SNAP"):
                snaps[st.split()[1]] = (list(vm), list(ds))
                continue
            if st.startswith("@RESTORE"):
                a_, b_ = snaps[st.split()[1]]
                vm, ds = list(a_), list(b_)
                continue
            if st.startswith("@WAIT"):
                tags = st.split()[1:]
                nv = nd = None
                for tg in tags:
                    iv = max([i for i, x in enumerate(vm) if x == tg], default=None)
                    idd = max([i for i, x in enumerate(ds) if x == tg], default=None)
                    assert iv is not None or idd is not None, tg
                    if iv is not None:
                        n = len(vm) - 1 - iv
                        nv = n if nv is None else min(nv, n)
                    if idd is not None:
                        n = len(ds) - 1 - idd
                        nd = n if nd is None else min(nd, n)
                w = "    s_waitcnt"
                if nv is not None:
                    w += f" vmcnt({min(nv, 63)})"
                if nd is not None:
                    w += f" lgkmcnt({min(nd, 15)})"
                out.append(w)
                continue
            tag = None
            if ";@T:" in l:
                l, tag = l.split(" ;@T:")
            if st.startswith("buffer_") or st.startswith("global_"):
                vm.append(tag)
            elif st.startswith("ds_"):
                ds.append(tag)
            out.append(l)
        return "\n".join(out) + "\n"


def merge(primary, filler, per, key="v_mfma"):
    out = []
    fi = 0
    acc = 0.0
    for l in primary:
        out.append(l)
        if l.strip().startswith(key):
            acc += per
            while acc >= 1.0 and fi < len(filler):
                f = filler[fi]
                fi += 1
                out.append(f)
                if not f.strip().startswith("@"):
                    acc -= 1.0
    out.extend(filler[fi:])
    return out


def merge_any(primary, filler, every):
    out = []
    fi = 0
    n = 0
    for l in primary:
        out.append(l)
        if not l.strip().startswith("@"):
            n += 1
            if n % every == 0 and fi < len(filler):
                out.extend(filler[fi])
                fi += 1
    for f in filler[fi:]:
        out.extend(f)
    return out


def kd(name, vgpr, agpr, sgpr=102):
    acc = (vgpr + 3) // 4 * 4
    nfv = acc + agpr if agpr else vgpr
    return f""".p2align 6
.amdhsa_kernel {name}
  .amdhsa_next_free_vgpr {nfv}
  .amdhsa_next_free_sgpr {sgpr}
  .amdhsa_accum_offset {acc}
  .amdhsa_group_segment_fixed_size 0
  .amdhsa_kernarg_size 96
  .amdhsa_user_sgpr_count 2
  .amdhsa_user_sgpr_kernarg_segment_ptr 1
  .amdhsa_system_sgpr_workgroup_id_x 1
.end_amdhsa_kernel
"""


def vr(b, n=4):
    return f"v[{b}:{b + n - 1}]"


def ar(b, n=4):
    return f"a[{b}:{b + n - 1}]"


def round_bf16_f32(a, dst, src, tmp=None):
    a(f"v_cvt_pk_bf16_f32 {dst}, {src}, {src}")
    a(f"v_lshlrev_b32 {dst}, 16, {dst}")


def gen_k0(a):
    name = "k0_prep_kernel"
    a.kernel_begin(name)
    L_end = "k0_end"
    a("s_cmp_ge_u32 s2, 256")
    a(f"s_cbranch_scc1 {L_end}")
    a.stamp(0)
    a("s_load_dwordx4 s[4:7], s[0:1], 8")
    a("s_load_dwordx4 s[8:11], s[0:1], 32")
    a("s_load_dwordx2 s[12:13], s[0:1], 48")
    a("s_load_dwordx4 s[16:19], s[0:1], 56")
    a("s_load_dwordx2 s[14:15], s[0:1], 88")
    a("s_load_dwordx2 s[34:35], s[0:1], 0")
    a("v_lshrrev_b32 v1, 6, v0")
    a("v_and_b32 v2, 63, v0")
    a("s_nop 0")
    a("v_readfirstlane_b32 s3, v1")
    a("v_and_b32 v3, 15, v2")
    a("v_lshrrev_b32 v4, 4, v2")
    a("v_lshlrev_b32 v7, 4, v2")
    a("s_waitcnt lgkmcnt(0)")
    a.srd(40, 14, WS_SIZE)
    a("s_cmp_lt_u32 s2, 21")
    a("s_cbranch_scc1 k0_mod")
    a("s_cmp_ge_u32 s2, 224")
    a("s_cbranch_scc1 k0_xh")
    STR = 144
    a("s_sub_u32 s20, s2, 21")
    a("s_lshl_b32 s20, s20, 3")
    a("s_add_u32 s20, s20, s3")
    a("v_lshrrev_b32 v5, 3, v2")
    a("v_and_b32 v6, 7, v2")
    a(f"s_mul_i32 s28, s3, {32 * STR}")
    a(f"v_mul_u32_u24 v8, {STR}, v5")
    a("v_lshl_add_u32 v8, v6, 4, v8")
    a("v_add_u32 v8, s28, v8")
    a("v_bfe_u32 v9, v2, 2, 2")
    a("v_lshl_add_u32 v9, v4, 3, v9")
    a(f"v_mul_u32_u24 v9, {STR}, v9")
    a("v_add_u32 v9, s28, v9")
    a("v_and_b32 v11, 3, v2")
    a("v_lshl_add_u32 v12, v11, 4, v9")
    a("v_lshlrev_b32 v6, 4, v6")
    a("v_mov_b32 v18, 0x7fffffff")
    a("s_cmp_lt_u32 s20, 336")
    a("s_cbranch_scc1 k0_pk_qkv")
    a("s_cmp_lt_u32 s20, 448")
    a("s_cbranch_scc1 k0_pk_wo")
    a("s_cmp_lt_u32 s20, 840")
    a("s_cbranch_scc1 k0_pk_wg")
    a("s_cmp_lt_u32 s20, 1232")
    a("s_cbranch_scc1 k0_pk_wu")
    a("s_branch k0_pk_wd")

    def divconst(dst_q, dst_r, src, d, tmp):
        m = (1 << 20) // d + 1
        a(f"s_mul_i32 s{tmp}, s{src}, {m}")
        a(f"s_lshr_b32 s{dst_q}, s{tmp}, 20")
        a(f"s_mul_i32 s{tmp}, s{dst_q}, {d}")
        a(f"s_sub_u32 s{dst_r}, s{src}, s{tmp}")

    def pack_body(rs, dst_offs, qkv=False, alt_last=False):
        for n in range(4):
            vo = 14 if (alt_last and n == 3) else 10
            a(f"buffer_load_dwordx4 {vr(20 + 4 * n)}, v{vo}, s[44:47], s26 offen")
            if n < 3:
                a(f"s_add_u32 s26, s26, {8 * rs}")
        for n in range(4):
            a(f"s_waitcnt vmcnt({3 - n})")
            a(f"ds_write_b128 v8, {vr(20 + 4 * n)} offset:{n * 8 * STR}")
        a("s_waitcnt lgkmcnt(0)")
        for t in range(4):
            for hf in range(2):
                if qkv:
                    av, off = [(13, 0), (15, 0), (13, 56), (16, 0)][t]
                else:
                    av, off = 12, (t >> 1) * 64 + (t & 1) * 8
                a(f"ds_read_b64_tr_b16 {vr(40 + 4 * t + 2 * hf, 2)}, v{av} offset:{off + hf * 4 * STR}")
        a.stamp(1)
        for t in range(4):
            a(f"s_waitcnt lgkmcnt({6 - 2 * t})")
            so, io = dst_offs[t]
            a(f"buffer_store_dwordx4 {vr(40 + 4 * t)}, v7, s[40:43], {so} offen offset:{io}")
        a.stamp(2)
        if STAMPS:
            a("s_waitcnt vmcnt(0)")
        a.stamp(3)
        a.stamp(4)
        a.stamp_flush("s[40:43]", 5, 0, 3)
        a(f"s_branch {L_end}")

    a.label("k0_pk_qkv")
    a.srd(44, 4, 448 * 1344 * 2)
    divconst(21, 22, 20, 24, 23)
    a("s_mul_i32 s24, s22, 112")
    a("s_mul_i32 s26, s21, 86016")
    a("s_add_u32 s26, s26, s24")
    a("v_mul_u32_u24 v10, 2688, v5")
    a("v_add_u32 v10, v10, v6")
    a("v_cmp_eq_u32 vcc, 112, v6")
    a("v_lshl_add_u32 v13, v11, 3, v9")
    a("v_add_u32 v15, 32, v13")
    a("v_cndmask_b32 v10, v10, v18, vcc")
    a("v_add_u32 v16, 88, v13")
    a("v_add_u32 v17, 112, v9")
    a("v_cmp_eq_u32 vcc, 3, v11")
    a("s_mul_i32 s30, s22, 56")
    a("s_add_u32 s30, s30, s21")
    a("v_cndmask_b32 v15, v15, v17, vcc")
    a("v_cndmask_b32 v16, v16, v17, vcc")
    a("s_lshl_b32 s30, s30, 10")
    a(f"s_add_u32 s30, s30, {WS_WQKV:#x}")
    for t in range(1, 4):
        a(f"s_add_u32 s{30 + t}, s30, {t * 14336}")
    pack_body(2688, [("s30", 0), ("s31", 0), ("s32", 0), ("s33", 0)], qkv=True)

    a.label("k0_pk_wo")
    a.srd(44, 6, 448 * 448 * 2)
    a("s_sub_u32 s20, s20, 336")
    divconst(21, 22, 20, 7, 23)
    a("s_mul_i32 s26, s21, 25088")
    a("s_lshl_b32 s24, s22, 7")
    a("s_add_u32 s26, s26, s24")
    a("v_mul_u32_u24 v10, 896, v5")
    a("v_add_u32 v10, v10, v6")
    a("v_cmp_le_u32 vcc, 4, v5")
    a("s_lshl_b32 s30, s22, 4")
    a("s_add_u32 s30, s30, s21")
    a("v_cndmask_b32 v14, v10, v18, vcc")
    a("s_lshl_b32 s30, s30, 12")
    a(f"s_add_u32 s30, s30, {WS_WO:#x}")
    pack_body(896, [("s30", t * 1024) for t in range(4)], alt_last=True)

    for mat, lab, base, ptr in ((0, "k0_pk_wg", 448, 8), (1, "k0_pk_wu", 840, 10)):
        a.label(lab)
        a.srd(44, ptr, 448 * 1792 * 2)
        a(f"s_sub_u32 s20, s20, {base}")
        divconst(21, 22, 20, 28, 23)
        a("s_mul_i32 s26, s21, 114688")
        a("s_lshl_b32 s24, s22, 7")
        a("s_add_u32 s26, s26, s24")
        a("v_mul_u32_u24 v10, 3584, v5")
        a("v_add_u32 v10, v10, v6")
        a("s_mul_i32 s30, s22, 28")
        a("s_add_u32 s30, s30, s21")
        a("s_lshl_b32 s30, s30, 12")
        a(f"s_add_u32 s30, s30, {WS_WGU + mat * 2048:#x}")
        a("s_add_u32 s31, s30, 57344")
        pack_body(3584, [("s30", 0), ("s30", 1024), ("s31", 0), ("s31", 1024)])

    a.label("k0_pk_wd")
    a.srd(44, 12, 1792 * 448 * 2)
    a("s_sub_u32 s20, s20, 1232")
    divconst(21, 22, 20, 7, 23)
    a("s_mul_i32 s26, s21, 28672")
    a("s_lshl_b32 s24, s22, 7")
    a("s_add_u32 s26, s26, s24")
    a("v_mul_u32_u24 v10, 896, v5")
    a("v_add_u32 v10, v10, v6")
    a("s_mul_i32 s30, s22, 56")
    a("s_add_u32 s30, s30, s21")
    a("s_lshl_b32 s30, s30, 12")
    a(f"s_add_u32 s30, s30, {WS_WD:#x}")
    pack_body(896, [("s30", t * 1024) for t in range(4)])

    a.label("k0_xh")
    a("s_cmp_ge_u32 s3, 4")
    a(f"s_cbranch_scc1 {L_end}")
    a.srd(44, 34, 2048 * 896)
    a("s_sub_u32 s20, s2, 224")
    a("s_lshl_b32 s20, s20, 2")
    a("s_add_u32 s20, s20, s3")
    a("s_mul_i32 s26, s20, 14336")
    a(f"s_add_u32 s30, s26, {WS_XH:#x}")
    VX = 64
    for n in range(14):
        a(f"buffer_load_dwordx4 {vr(VX + 4 * n)}, v7, s[44:47], s26 offen offset:{(n % 4) * 1024}")
        if n % 4 == 3:
            a("s_add_u32 s26, s26, 4096")
    a("s_mul_i32 s28, s3, 14848")
    for n in range(14):
        a(f"v_add_u32 v{20 + n}, {64 * n}, v2")
        a(f"v_mul_u32_u24 v34, 1171, v{20 + n}")
        a("v_lshrrev_b32 v34, 16, v34")
        a(f"v_lshlrev_b32 v{20 + n}, 4, v{20 + n}")
        a(f"v_lshl_add_u32 v{20 + n}, v34, 5, v{20 + n}")
        a(f"v_add_u32 v{20 + n}, s28, v{20 + n}")
    a("v_mul_u32_u24 v9, 928, v3")
    a("v_lshl_add_u32 v9, v4, 4, v9")
    a("v_add_u32 v9, s28, v9")
    for n in range(14):
        a(f"s_waitcnt vmcnt({13 - n})")
        a(f"ds_write_b128 v{20 + n}, {vr(VX + 4 * n)}")
    a("s_waitcnt lgkmcnt(0)")
    for ks in range(14):
        a(f"ds_read_b128 {vr(VX + 4 * ks)}, v9 offset:{ks * 64}")
    t = 16
    s0, s1, q0, q1, ones = t, t + 1, t + 2, t + 3, t + 4
    a(f"v_mov_b32 v{ones}, 0x3f803f80")
    for r in (s0, s1, q0, q1):
        a(f"v_mov_b32 v{r}, 0")
    for i in range(56):
        if i % 4 == 0:
            a(f"s_waitcnt lgkmcnt({13 - i // 4})")
        x = VX + i
        sx = s0 if (i & 1) == 0 else s1
        qx = q0 if (i & 1) == 0 else q1
        a(f"v_dot2_f32_bf16 v{sx}, v{x}, v{ones}, v{sx}")
        a(f"v_dot2_f32_bf16 v{qx}, v{x}, v{x}, v{qx}")
    a.nop(3)
    a(f"v_add_f32 v{s0}, v{s0}, v{s1}")
    a(f"v_add_f32 v{q0}, v{q0}, v{q1}")
    ln_finalize(a, s0, q0, s1, q1, 24)
    for ks in range(14):
        yv = 32 + 8 * (ks & 1)
        ov = 48 + 4 * (ks & 3)
        for d in range(4):
            x = VX + 4 * ks + d
            a(f"v_lshlrev_b32 v{yv + 2 * d}, 16, v{x}")
            a(f"v_and_b32 v{yv + 2 * d + 1}, 0xffff0000, v{x}")
        for d in range(4):
            a(f"v_pk_fma_f32 {vr(yv + 2 * d, 2)}, {vr(yv + 2 * d, 2)}, v[24:25], v[26:27]")
        for d in range(4):
            a(f"v_cvt_pk_bf16_f32 v{ov + d}, v{yv + 2 * d}, v{yv + 2 * d + 1}")
        a(f"buffer_store_dwordx4 {vr(ov)}, v7, s[40:43], s30 offen offset:{(ks % 4) * 1024}")
        if ks % 4 == 3:
            a("s_add_u32 s30, s30, 4096")
    a.stamp(1)
    a.stamp(2)
    if STAMPS:
        a("s_waitcnt vmcnt(0)")
    a.stamp(3)
    a.stamp(4)
    a.stamp_flush("s[40:43]", 5, 0, 3)
    a(f"s_branch {L_end}")

    a.label("k0_mod")
    a.srd(44, 16, 896)
    a.srd(48, 18, 448 * 2688 * 2)
    a("s_mul_i32 s20, s3, 56")
    a("v_add_u32 v5, s20, v2")
    a("v_lshlrev_b32 v5, 1, v5")
    a("buffer_load_ushort v6, v5, s[44:47], 0 offen")
    a("s_mul_i32 s21, s20, 5376")
    a("s_lshl_b32 s22, s2, 8")
    a("s_add_u32 s21, s21, s22")
    a("v_mul_u32_u24 v8, 5376, v4")
    a("v_lshl_add_u32 v8, v3, 4, v8")
    for n in range(14):
        a(f"buffer_load_dwordx4 {vr(64 + 4 * n)}, v8, s[48:51], s21 offen")
        if n != 13:
            a("s_add_u32 s21, s21, 21504")
    a("v_lshlrev_b32 v9, 2, v4")
    a.stamp(1)
    a("s_waitcnt vmcnt(14)")
    a("v_lshlrev_b32 v6, 16, v6")
    a("v_mul_f32 v10, 0xbfb8aa3b, v6")
    a("v_exp_f32 v10, v10")
    a("s_nop 0")
    a("v_add_f32 v10, 1.0, v10")
    a("v_rcp_f32 v10, v10")
    a("s_nop 0")
    a("v_mul_f32 v10, v6, v10")
    round_bf16_f32(a, "v10", "v10")
    for n in range(14):
        a(f"v_add_u32 v11, {16 * n}, v9")
        a(f"ds_bpermute_b32 v{20 + n}, v11, v10")
    for j in range(8):
        a(f"v_mov_b32 v{40 + j}, 0")
    a("s_waitcnt lgkmcnt(0)")
    for n in range(14):
        a(f"s_waitcnt vmcnt({13 - n})")
        for d in range(4):
            x = 64 + 4 * n + d
            a(f"v_lshlrev_b32 v12, 16, v{x}")
            a(f"v_and_b32 v13, 0xffff0000, v{x}")
            a(f"v_fmac_f32 v{40 + 2 * d}, v{20 + n}, v12")
            a(f"v_fmac_f32 v{41 + 2 * d}, v{20 + n}, v13")
    a.stamp(2)
    a.nop(2)
    for p_ in range(4):
        a(f"v_permlane32_swap_b32 v{40 + 2 * p_}, v{41 + 2 * p_}")
    a.nop(2)
    for p_ in range(4):
        a(f"v_add_f32 v{50 + p_}, v{40 + 2 * p_}, v{41 + 2 * p_}")
    a.nop(2)
    a("v_permlane16_swap_b32 v50, v51")
    a("v_permlane16_swap_b32 v52, v53")
    a.nop(2)
    a("v_add_f32 v54, v50, v51")
    a("v_add_f32 v55, v52, v53")
    a("v_and_b32 v12, 1, v4")
    a("v_lshlrev_b32 v12, 1, v12")
    a("v_lshrrev_b32 v13, 1, v4")
    a("v_or_b32 v12, v12, v13")
    a("v_lshl_add_u32 v12, v3, 3, v12")
    a("v_lshlrev_b32 v12, 2, v12")
    a("s_lshl_b32 s23, s3, 9")
    a("v_add_u32 v12, s23, v12")
    a("ds_write2_b32 v12, v54, v55 offset0:0 offset1:4")
    a("s_waitcnt lgkmcnt(0)")
    a.stamp(3)
    a("s_barrier")
    a("s_cmp_ge_u32 s3, 2")
    a(f"s_cbranch_scc1 {L_end}")
    a("v_lshlrev_b32 v16, 2, v0")
    for w in range(8):
        a(f"ds_read_b32 v{20 + w}, v16 offset:{w * 512}")
    a("s_waitcnt lgkmcnt(0)")
    a("v_add_f32 v20, v20, v21")
    a("v_add_f32 v22, v22, v23")
    a("v_add_f32 v24, v24, v25")
    a("v_add_f32 v26, v26, v27")
    a("v_add_f32 v20, v20, v22")
    a("v_add_f32 v24, v24, v26")
    a("v_add_f32 v20, v20, v24")
    round_bf16_f32(a, "v20", "v20")
    a("v_add_f32 v21, 1.0, v20")
    round_bf16_f32(a, "v21", "v21")
    a("s_lshl_b32 s24, s2, 7")
    a("v_add_u32 v22, s24, v0")
    a("v_subrev_u32 v23, 448, v22")
    a("v_subrev_u32 v24, 1792, v22")
    a("v_min_u32 v23, v23, v24")
    a("v_cmp_gt_u32 vcc, 448, v23")
    a("s_nop 1")
    a("v_cndmask_b32 v20, v20, v21, vcc")
    a("v_lshlrev_b32 v22, 2, v22")
    a("buffer_store_dword v20, v22, s[40:43], 0 offen")
    if STAMPS:
        a("s_waitcnt vmcnt(0)")
    a.stamp(4)
    a.stamp_flush("s[40:43]", 5, 0, 3)
    a.label(L_end)
    a("s_endpgm")
    return kd(name, 120, 0)


def ln_finalize(a, s0, q0, s1, q1, rs):
    for op in ("v_permlane16_swap_b32", "v_permlane32_swap_b32"):
        a(f"v_mov_b32 v{s1}, v{s0}")
        a(f"v_mov_b32 v{q1}, v{q0}")
        a.nop(2)
        a(f"{op} v{s0}, v{s1}")
        a(f"{op} v{q0}, v{q1}")
        a.nop(2)
        a(f"v_add_f32 v{s0}, v{s0}, v{s1}")
        a(f"v_add_f32 v{q0}, v{q0}, v{q1}")
    inv = f32bits(1.0 / 448.0)
    mean, var = s1, q1
    a(f"v_mul_f32 v{mean}, {inv:#x}, v{s0}")
    a(f"v_mul_f32 v{var}, {inv:#x}, v{q0}")
    a(f"v_fma_f32 v{var}, -v{mean}, v{mean}, v{var}")
    a(f"v_max_f32 v{var}, 0, v{var}")
    round_bf16_f32(a, f"v{mean}", f"v{mean}")
    round_bf16_f32(a, f"v{var}", f"v{var}")
    a(f"v_add_f32 v{var}, {f32bits(1e-5):#x}, v{var}")
    round_bf16_f32(a, f"v{var}", f"v{var}")
    a(f"v_sqrt_f32 v{var}, v{var}")
    a("s_nop 0")
    round_bf16_f32(a, f"v{var}", f"v{var}")
    a(f"v_rcp_f32 v{rs}, v{var}")
    a("s_nop 0")
    a(f"v_mov_b32 v{rs + 1}, v{rs}")
    a(f"v_mul_f32 v{rs + 2}, v{mean}, v{rs}")
    a(f"v_sub_f32 v{rs + 2}, 0, v{rs + 2}")
    a(f"v_mov_b32 v{rs + 3}, v{rs + 2}")


def ln_norm(a, vx, rs, v_rd_mod, lds_vaddr, lds_off, packed, xtag, uid):
    def rd(ks):
        b = 16 + 16 * (ks & 1)
        a.t(f"ds_read_b128 {vr(b)}, {v_rd_mod} offset:{ks * 128}", f"{uid}m{ks}")
        a.t(f"ds_read_b128 {vr(b + 4)}, {v_rd_mod} offset:{ks * 128 + 16}", f"{uid}m{ks}")
        a.t(f"ds_read_b128 {vr(b + 8)}, {v_rd_mod} offset:{1792 + ks * 128}", f"{uid}m{ks}")
        a.t(f"ds_read_b128 {vr(b + 12)}, {v_rd_mod} offset:{1792 + ks * 128 + 16}", f"{uid}m{ks}")
    rd(0)
    yv = 48
    for ks in range(14):
        sv = 16 + 16 * (ks & 1)
        cv = sv + 8
        ov = 56 + 4 * (ks & 1)
        if ks < 13:
            rd(ks + 1)
        if xtag is not None:
            a.wait(f"{xtag}{ks}")
        for d in range(4):
            x = vx + 4 * ks + d
            a(f"v_lshlrev_b32 v{yv + 2 * d}, 16, v{x}")
            a(f"v_and_b32 v{yv + 2 * d + 1}, 0xffff0000, v{x}")
        if rs is not None:
            if packed:
                for d in range(4):
                    a(f"v_pk_fma_f32 {vr(yv + 2 * d, 2)}, {vr(yv + 2 * d, 2)}, {vr(rs, 2)}, {vr(rs + 2, 2)}")
            else:
                for d in range(8):
                    a(f"v_fma_f32 v{yv + d}, v{yv + d}, v{rs}, v{rs + 2}")
        a.wait(f"{uid}m{ks}")
        if packed:
            for d in range(4):
                a(f"v_pk_fma_f32 {vr(yv + 2 * d, 2)}, {vr(yv + 2 * d, 2)}, {vr(cv + 2 * d, 2)}, {vr(sv + 2 * d, 2)}")
        else:
            for d in range(8):
                a(f"v_fma_f32 v{yv + d}, v{yv + d}, v{cv + d}, v{sv + d}")
        for d in range(4):
            a(f"v_cvt_pk_bf16_f32 v{ov + d}, v{yv + 2 * d}, v{yv + 2 * d + 1}")
        a.t(f"ds_write_b128 {lds_vaddr}, {vr(ov)} offset:{lds_off + ks * 1024}", f"{uid}w")


def gen_k1(a):
    name = "k1_qkv_kernel"
    a.kernel_begin(name)
    L_end = "k1_end"
    a("s_cmp_ge_u32 s2, 256")
    a(f"s_cbranch_scc1 {L_end}")
    a.stamp(0)
    a("s_load_dwordx2 s[6:7], s[0:1], 88")
    a("v_lshrrev_b32 v1, 6, v0")
    a("v_and_b32 v2, 63, v0")
    a("s_nop 0")
    a("v_readfirstlane_b32 s3, v1")
    a("v_and_b32 v3, 15, v2")
    a("v_lshrrev_b32 v4, 4, v2")
    a("v_lshlrev_b32 v5, 4, v2")
    a("s_lshr_b32 s10, s2, 3")
    a("s_and_b32 s8, s10, 3")
    a("s_and_b32 s11, s2, 1")
    a("s_lshl_b32 s11, s11, 2")
    a("s_add_u32 s8, s8, s11")
    a("s_lshr_b32 s9, s10, 2")
    a("s_and_b32 s11, s2, 6")
    a("s_lshl_b32 s11, s11, 2")
    a("s_add_u32 s9, s9, s11")
    a("s_waitcnt lgkmcnt(0)")
    a.srd(16, 6, WS_SIZE)
    VM = 120
    for r in range(4):
        a.t(f"buffer_load_dwordx4 {vr(VM + 4 * r)}, v5, s[16:19], 0 offen offset:{WS_MOD + r * 1024}", "mod")
    a("s_lshl_b32 s10, s9, 2")
    a("s_add_u32 s10, s10, s3")
    a("s_mul_i32 s12, s10, 14336")
    a(f"s_add_u32 s12, s12, {WS_XH:#x}")
    VX = 64
    for ks in range(14):
        a.t(f"buffer_load_dwordx4 {vr(VX + 4 * ks)}, v5, s[16:19], s12 offen offset:{(ks % 4) * 1024}", f"x{ks}")
        if ks % 4 == 3:
            a("s_add_u32 s12, s12, 4096")
    a("s_mul_i32 s21, s8, 12")
    a("s_mul_i32 s22, s3, 3")
    a("s_add_u32 s21, s21, s22")
    a("s_mul_i32 s22, s21, 14336")
    a(f"s_add_u32 s22, s22, {WS_WQKV:#x}")
    a("s_add_u32 s23, s22, 14336")
    a("s_add_u32 s24, s23, 14336")
    groups = []
    for ks in range(14):
        for j in range(3):
            old = a.capture()
            if ks and ks % 4 == 0:
                a(f"s_add_u32 s{22 + j}, s{22 + j}, 4096")
            a.t(f"buffer_load_dwordx4 {ar((ks * 3 + j) * 4)}, v5, s[16:19], s{22 + j} offen offset:{(ks % 4) * 1024}", f"b{ks}")
            groups.append(a.release(old))
    NPRE = 12
    for g_ in groups[:NPRE]:
        a.lines.extend(g_)
    LDS_MOD = 57344
    a("s_lshl_b32 s25, s3, 12")
    a(f"s_add_u32 s25, s25, {LDS_MOD}")
    a("v_add_u32 v8, s25, v5")
    a("v_lshlrev_b32 v9, 5, v4")
    a("v_add_u32 v9, s25, v9")
    a("s_mul_i32 s26, s3, 14336")
    a("v_add_u32 v10, s26, v5")
    a.stamp(1)
    a.wait("mod")
    a.stamp(2)
    for r in range(4):
        a.t(f"ds_write_b128 v8, {vr(VM + 4 * r)} offset:{r * 1024}", "modw")
    a.wait("modw")
    old = a.capture()
    ln_norm(a, VX, None, "v9", "v10", 0, True, "x", "k1")
    ln = a.release(old)
    a.lines.extend(merge_any(ln, groups[NPRE:], 7))
    a.wait("k1w")
    a.stamp(3)
    a("s_barrier")
    a.stamp(4)
    a.raw("@SNAP k1")
    a("s_cmp_lt_u32 s21, 63")
    a("s_cbranch_scc1 k1_v0")
    a("s_cmp_eq_u32 s21, 63")
    a("s_cbranch_scc1 k1_v1")
    a("s_branch k1_v2")
    ACC = 64
    AF = 112
    for var, types in enumerate((("qk", "qk", "qk"), ("qk", "v", "v"), ("v", "v", "v"))):
        a.label(f"k1_v{var}")
        a.raw("@RESTORE k1")
        for mt in range(4):
            a.t(f"ds_read_b128 {vr(AF + 4 * mt)}, v5 offset:{mt * 14336}", "af0")
        for ks in range(14):
            cur = AF + 16 * (ks & 1)
            nxt = AF + 16 * ((ks + 1) & 1)
            if ks < 13:
                for mt in range(4):
                    a.t(f"ds_read_b128 {vr(nxt + 4 * mt)}, v5 offset:{mt * 14336 + (ks + 1) * 1024}", f"af{ks + 1}")
            a.wait(f"af{ks}", f"b{ks}")
            for mt in range(4):
                for j in range(3):
                    acc = vr(ACC + (mt * 3 + j) * 4)
                    c = "0" if ks == 0 else acc
                    b = ar((ks * 3 + j) * 4)
                    x = vr(cur + 4 * mt)
                    if types[j] == "qk":
                        a(f"v_mfma_f32_16x16x32_bf16 {acc}, {b}, {x}, {c}")
                    else:
                        a(f"v_mfma_f32_16x16x32_bf16 {acc}, {x}, {b}, {c}")
            if ks == 12:
                a("s_lshl_b32 s30, s9, 12")
                a("v_lshrrev_b32 v13, 1, v4")
                a("v_and_b32 v12, 1, v4")
                a("v_lshlrev_b32 v11, 9, v13")
                a("v_lshl_add_u32 v11, v3, 4, v11")
                a("v_lshl_add_u32 v11, v12, 3, v11")
                a("v_add_u32 v11, s30, v11")
                a("v_lshlrev_b32 v12, 5, v12")
                a("v_add_u32 v12, v12, v3")
                a("v_lshlrev_b32 v12, 4, v12")
                a("v_lshlrev_b32 v13, 3, v13")
                a("v_add3_u32 v12, v12, v13, s30")
                a("v_cmp_eq_u32 vcc, 12, v3")
                a("v_mov_b32 v14, 0x3f803f80")
                for j in range(3):
                    a(f"s_add_u32 s31, s21, {j}")
                    a("s_and_b32 s32, s31, 1")
                    a("s_and_b32 s33, s31, 31")
                    a("s_lshr_b32 s33, s33, 1")
                    a("s_lshl_b32 s33, s33, 17")
                    if types[j] == "qk":
                        a("s_lshr_b32 s34, s31, 5")
                        a("s_lshl_b32 s34, s34, 21")
                        a("s_lshl_b32 s32, s32, 10")
                        a("s_add_u32 s33, s33, s34")
                        a("s_add_u32 s33, s33, s32")
                        a(f"s_add_u32 s{36 + j}, s33, {WS_Q:#x}")
                    else:
                        a("s_lshl_b32 s35, s32, 8")
                        a("s_add_u32 s33, s33, s35")
                        a(f"s_add_u32 s{36 + j}, s33, {WS_VT:#x}")
                        a(f"s_mov_b32 s{40 + j}, s32")
        a.stamp(5)
        a.nop(8)
        for mt in range(4):
            for j in range(3):
                acc = ACC + (mt * 3 + j) * 4
                o = 16 + (mt * 3 + j) * 2
                a(f"v_cvt_pk_bf16_f32 v{o}, v{acc}, v{acc + 1}")
                a(f"v_cvt_pk_bf16_f32 v{o + 1}, v{acc + 2}, v{acc + 3}")
        for j in range(3):
            if types[j] == "v":
                lab = a.newlabel("k1_noones")
                a(f"s_cmp_eq_u32 s{40 + j}, 0")
                a(f"s_cbranch_scc1 {lab}")
                for mt in range(4):
                    o = 16 + (mt * 3 + j) * 2
                    a(f"v_cndmask_b32 v{o}, v{o}, v14, vcc")
                    a(f"v_cndmask_b32 v{o + 1}, v{o + 1}, v14, vcc")
                a.label(lab)
        for mt in range(4):
            for j in range(3):
                o = 16 + (mt * 3 + j) * 2
                if types[j] == "qk":
                    a(f"buffer_store_dwordx2 {vr(o, 2)}, v11, s[16:19], s{36 + j} offen offset:{(mt >> 1) * 2048 + (mt & 1) * 256}")
                else:
                    a(f"buffer_store_dwordx2 {vr(o, 2)}, v12, s[16:19], s{36 + j} offen offset:{(mt >> 1) * 2048 + (mt & 1) * 1024}")
        a.stamp(6)
        if STAMPS:
            a("s_waitcnt vmcnt(0)")
        a.stamp(7)
        a.stamp_flush("s[16:19]", 8, 1)
        a(f"s_branch {L_end}")
    a.label(L_end)
    a("s_endpgm")
    return kd(name, 144, 168)


def gen_k2(a):
    name = "k2_attn_kernel"
    a.kernel_begin(name)
    L_end = "k2_end"
    a("s_cmp_ge_u32 s2, 256")
    a(f"s_cbranch_scc1 {L_end}")
    a.stamp(0)
    a("s_load_dwordx2 s[6:7], s[0:1], 88")
    a("v_lshrrev_b32 v1, 6, v0")
    a("v_and_b32 v2, 63, v0")
    a("s_nop 0")
    a("v_readfirstlane_b32 s3, v1")
    a("v_and_b32 v3, 31, v2")
    a("v_lshrrev_b32 v4, 5, v2")
    a("v_lshlrev_b32 v5, 4, v2")
    a("v_lshlrev_b32 v6, 6, v3")
    a("v_lshlrev_b32 v7, 4, v4")
    a("v_add_u32 v6, v6, v7")
    a("s_and_b32 s8, s2, 7")
    a("s_lshl_b32 s8, s8, 1")
    a("s_lshr_b32 s9, s2, 3")
    a("s_and_b32 s10, s9, 1")
    a("s_add_u32 s8, s8, s10")
    a("s_lshr_b32 s9, s2, 4")
    a("s_lshl_b32 s9, s9, 2")
    a("s_add_u32 s9, s9, s3")
    a("s_waitcnt lgkmcnt(0)")
    a.srd(16, 6, WS_SIZE)
    a("s_lshl_b32 s10, s8, 17")
    a("s_lshl_b32 s11, s9, 11")
    a("s_add_u32 s12, s10, s11")
    a(f"s_add_u32 s12, s12, {WS_Q:#x}")
    QF = 8
    a(f"buffer_load_dwordx4 {vr(QF)}, v5, s[16:19], s12 offen")
    a(f"buffer_load_dwordx4 {vr(QF + 4)}, v5, s[16:19], s12 offen offset:1024")
    for tt in range(9):
        a(f"s_add_i32 s{20 + tt}, s9, {tt - 8}")
        a(f"s_max_i32 s{20 + tt}, s{20 + tt}, 0")
        a(f"s_lshl_b32 s{20 + tt}, s{20 + tt}, 11")
        a(f"s_add_u32 s{20 + tt}, s{20 + tt}, s10")
        a(f"s_add_u32 s{30 + tt}, s{20 + tt}, {WS_VT:#x}")
        a(f"s_add_u32 s{20 + tt}, s{20 + tt}, {WS_K:#x}")
    for tt in range(9):
        a(f"buffer_load_dwordx4 {ar(tt * 8)}, v5, s[16:19], s{20 + tt} offen")
        a(f"buffer_load_dwordx4 {ar(tt * 8 + 4)}, v5, s[16:19], s{20 + tt} offen offset:1024")
    for tt in range(9):
        a(f"buffer_load_dwordx4 {ar(72 + tt * 8)}, v5, s[16:19], s{30 + tt} offen")
        a(f"buffer_load_dwordx4 {ar(72 + tt * 8 + 4)}, v5, s[16:19], s{30 + tt} offen offset:1024")
    a.stamp(1)
    a("s_sub_i32 s13, 8, s9")
    a("s_max_i32 s13, s13, 0")
    MA, MB, MN = 16, 32, 48
    S = 64
    O = 208
    a("v_mov_b32 v224, 0xff800000")
    a("v_mov_b32 v225, 0")
    a("v_lshlrev_b32 v226, 2, v4")
    for r in range(16):
        kk_c = 8 * (r >> 2) + (r & 3)
        a(f"v_add_u32 v227, {kk_c}, v226")
        a("v_cmp_gt_u32 vcc, v227, v3")
        a("s_nop 1")
        a(f"v_cndmask_b32 v{MA + r}, v224, v225, vcc")
        a(f"v_cndmask_b32 v{MB + r}, v225, v224, vcc")
        a(f"v_mov_b32 v{MN + r}, v224")
    a("s_nop 1")
    for tt in range(9):
        a(f"s_waitcnt vmcnt({18 + 2 * (8 - tt)})")
        s = vr(S + 16 * tt, 16)
        c = vr(MA, 16) if tt == 0 else (vr(MB, 16) if tt == 8 else "0")
        if tt < 8:
            li, lj = a.newlabel("k2_inv"), a.newlabel("k2_join")
            a(f"s_cmp_gt_u32 s13, {tt}")
            a(f"s_cbranch_scc1 {li}")
            a(f"v_mfma_f32_32x32x16_bf16 {s}, {ar(tt * 8)}, {vr(QF)}, {c}")
            a(f"s_branch {lj}")
            a.label(li)
            a(f"v_mfma_f32_32x32x16_bf16 {s}, {ar(tt * 8)}, {vr(QF)}, {vr(MN, 16)}")
            a.label(lj)
        else:
            a(f"v_mfma_f32_32x32x16_bf16 {s}, {ar(tt * 8)}, {vr(QF)}, {c}")
        a(f"v_mfma_f32_32x32x16_bf16 {s}, {ar(tt * 8 + 4)}, {vr(QF + 4)}, {s}")
    a.nop(12)
    a.stamp(2)
    m0, m1 = 224, 225
    a(f"v_max3_f32 v{m0}, v{S}, v{S + 1}, v{S + 2}")
    a(f"v_max3_f32 v{m1}, v{S + 3}, v{S + 4}, v{S + 5}")
    i = 6
    k = 0
    while i < 144:
        m = m0 if k % 2 == 0 else m1
        a(f"v_max3_f32 v{m}, v{m}, v{S + i}, v{S + i + 1}")
        i += 2
        k += 1
    a(f"v_max_f32 v{m0}, v{m0}, v{m1}")
    a(f"v_mov_b32 v{m1}, v{m0}")
    a.nop(2)
    a(f"v_permlane32_swap_b32 v{m0}, v{m1}")
    a.nop(2)
    a(f"v_max_f32 v{m0}, v{m0}, v{m1}")
    cs = (28 ** -0.5) * 1.4426950408889634
    a(f"s_mov_b32 s14, {f32bits(cs):#x}")
    a(f"v_mul_f32 v{m0}, s14, v{m0}")
    a(f"v_sub_f32 v{m0}, 0, v{m0}")
    for i in range(144):
        a(f"v_fma_f32 v{S + i}, v{S + i}, s14, v{m0}")
    for i in range(144):
        a(f"v_exp_f32 v{S + i}, v{S + i}")
    a("s_nop 0")
    for i in range(72):
        a(f"v_cvt_pk_bf16_f32 v{S + i}, v{S + 2 * i}, v{S + 2 * i + 1}")
    a.stamp(3)
    a("s_waitcnt vmcnt(0)")
    a.stamp(4)
    a.nop(2)
    first = True
    for tt in range(9):
        for t in range(2):
            c = "0" if first else vr(O, 16)
            first = False
            a(f"v_mfma_f32_32x32x16_bf16 {vr(O, 16)}, {ar(72 + tt * 8 + 4 * t)}, {vr(S + 8 * tt + 4 * t)}, {c}")
    a.nop(12)
    a(f"v_mov_b32 v224, v{O + 12}")
    a(f"v_mov_b32 v225, v{O + 12}")
    a.nop(2)
    a("v_permlane32_swap_b32 v224, v225")
    a.nop(2)
    a("v_rcp_f32 v225, v225")
    a("s_nop 0")
    for r in range(16):
        a(f"v_mul_f32 v{O + r}, v{O + r}, v225")
    for r in range(8):
        a(f"v_cvt_pk_bf16_f32 v{16 + r}, v{O + 2 * r}, v{O + 2 * r + 1}")
    a("v_lshrrev_b32 v226, 4, v3")
    a("v_lshlrev_b32 v226, 14, v226")
    a("v_and_b32 v227, 15, v3")
    a("v_lshlrev_b32 v227, 4, v227")
    a("v_lshlrev_b32 v228, 3, v4")
    a("v_add3_u32 v226, v226, v227, v228")
    a("s_lshl_b32 s15, s9, 15")
    a("s_lshl_b32 s40, s8, 10")
    a("s_add_u32 s15, s15, s40")
    a(f"s_add_u32 s15, s15, {WS_OP:#x}")
    for i in range(4):
        a(f"buffer_store_dwordx2 {vr(16 + 2 * i, 2)}, v226, s[16:19], s15 offen offset:{i * 256}")
    a.stamp(5)
    a("s_waitcnt vmcnt(0)")
    a.stamp(6)
    a.stamp_flush("s[16:19]", 7, 2)
    a.label(L_end)
    a("s_endpgm")
    return kd(name, 232, 144)


def gen_gemm_res(a, name, ksw, ks_total, ws_a, ws_b, res_from_x, gate_off, out_to_dout, depth):
    a.kernel_begin(name)
    L_end = name + "_end"
    a("s_cmp_ge_u32 s2, 224")
    a(f"s_cbranch_scc1 {L_end}")
    a.stamp(0)
    a("s_load_dwordx2 s[4:5], s[0:1], 0")
    a("s_load_dwordx2 s[6:7], s[0:1], 88")
    a("s_load_dwordx2 s[44:45], s[0:1], 72")
    a("v_lshrrev_b32 v1, 6, v0")
    a("v_and_b32 v2, 63, v0")
    a("s_nop 0")
    a("v_readfirstlane_b32 s3, v1")
    a("v_and_b32 v3, 15, v2")
    a("v_lshrrev_b32 v4, 4, v2")
    a("v_lshlrev_b32 v5, 4, v2")
    a("s_lshr_b32 s10, s2, 3")
    a("s_mul_i32 s8, s10, 149797")
    a("s_lshr_b32 s9, s8, 20")
    a("s_mul_i32 s8, s9, 7")
    a("s_sub_u32 s8, s10, s8")
    a("s_and_b32 s10, s2, 7")
    a("s_lshl_b32 s10, s10, 2")
    a("s_add_u32 s9, s9, s10")
    a("s_waitcnt lgkmcnt(0)")
    a.srd(12, 4, 2048 * 896)
    a.srd(16, 6, WS_SIZE)
    a.srd(48, 44, 2048 * 896)
    a(f"s_mul_i32 s10, s3, {ksw}")
    for mt in range(4):
        a(f"s_lshl_b32 s{20 + mt}, s9, 2")
        a(f"s_add_u32 s{20 + mt}, s{20 + mt}, {mt}")
        a(f"s_mul_i32 s{20 + mt}, s{20 + mt}, {ks_total}")
        a(f"s_add_u32 s{20 + mt}, s{20 + mt}, s10")
        a(f"s_lshl_b32 s{20 + mt}, s{20 + mt}, 10")
        a(f"s_add_u32 s{20 + mt}, s{20 + mt}, {ws_a:#x}")
    a(f"s_mul_i32 s24, s8, {ks_total}")
    a("s_add_u32 s24, s24, s10")
    a("s_lshl_b32 s24, s24, 12")
    a(f"s_add_u32 s24, s24, {ws_b:#x}")

    def issue(ks):
        slot = ks % depth
        base = slot * 32
        if ks and ks % 4 == 0:
            for mt in range(4):
                a(f"s_add_u32 s{20 + mt}, s{20 + mt}, 4096")
        for mt in range(4):
            a(f"buffer_load_dwordx4 {ar(base + 4 * mt)}, v5, s[16:19], s{20 + mt} offen offset:{(ks % 4) * 1024}")
        for t in range(4):
            a(f"buffer_load_dwordx4 {ar(base + 16 + 4 * t)}, v5, s[16:19], s24 offen offset:{t * 1024}")
        a("s_add_u32 s24, s24, 4096")

    ACC = 64
    npre = min(depth, ksw)
    for ks in range(npre):
        issue(ks)
    a.stamp(1)
    for ks in range(ksw):
        issued = min(ksw, npre + ks)
        a(f"s_waitcnt vmcnt({8 * (issued - ks - 1)})")
        if ks == 0:
            a.stamp(2)
        base = (ks % depth) * 32
        for mt in range(4):
            for t in range(4):
                acc = vr(ACC + (mt * 4 + t) * 4)
                c = "0" if ks == 0 else acc
                a(f"v_mfma_f32_16x16x32_bf16 {acc}, {ar(base + 16 + 4 * t)}, {ar(base + 4 * mt)}, {c}")
        if npre + ks < ksw:
            issue(npre + ks)
    a.stamp(3)
    a("s_lshl_b32 s26, s9, 6")
    a("s_lshl_b32 s27, s3, 4")
    a("s_add_u32 s26, s26, s27")
    a("v_add_u32 v6, s26, v3")
    a("s_mov_b32 s27, 896")
    a("v_mul_lo_u32 v6, v6, s27")
    a("v_lshlrev_b32 v7, 4, v4")
    a("s_lshl_b32 s28, s8, 7")
    a("v_add3_u32 v6, v6, v7, s28")
    a("s_lshl_b32 s29, s9, 2")
    a("s_add_u32 s29, s29, s3")
    a("s_mul_i32 s29, s29, 14")
    a("s_lshl_b32 s27, s8, 1")
    a("s_add_u32 s29, s29, s27")
    a("s_lshl_b32 s29, s29, 10")
    a(f"s_add_u32 s29, s29, {WS_X2:#x}")
    if res_from_x:
        a(f"buffer_load_dwordx4 {vr(16)}, v6, s[12:15], 0 offen")
        a(f"buffer_load_dwordx4 {vr(20)}, v6, s[12:15], 0 offen offset:64")
    else:
        a(f"buffer_load_dwordx4 {vr(16)}, v5, s[16:19], s29 offen")
        a(f"buffer_load_dwordx4 {vr(20)}, v5, s[16:19], s29 offen offset:1024")
    a("v_lshlrev_b32 v8, 5, v4")
    a("s_lshl_b32 s30, s8, 8")
    a(f"s_add_u32 s30, s30, {WS_MOD + gate_off * 4}")
    for p in range(2):
        a(f"buffer_load_dwordx4 {vr(24 + 8 * p)}, v8, s[16:19], s30 offen offset:{p * 128}")
        a(f"buffer_load_dwordx4 {vr(28 + 8 * p)}, v8, s[16:19], s30 offen offset:{p * 128 + 16}")
    a("s_lshl_b32 s31, s3, 14")
    a("v_add_u32 v9, s31, v5")
    a.nop(8)
    for tile in range(16):
        a(f"ds_write_b128 v9, {vr(ACC + tile * 4)} offset:{tile * 1024}")
    a("s_waitcnt lgkmcnt(0)")
    a.stamp(4)
    a("s_barrier")
    a.stamp(5)
    a("s_lshl_b32 s31, s3, 12")
    a("v_add_u32 v9, s31, v5")
    R = 128
    for w in range(4):
        for t in range(4):
            a(f"ds_read_b128 {vr(R + (w * 4 + t) * 4)}, v9 offset:{w * 16384 + t * 1024}")
    a("s_waitcnt lgkmcnt(0)")
    for t in range(4):
        for r in range(4):
            d = R + t * 4 + r
            a(f"v_add_f32 v{d}, v{d}, v{R + 16 + t * 4 + r}")
            a(f"v_add_f32 v{R + 32 + t * 4 + r}, v{R + 32 + t * 4 + r}, v{R + 48 + t * 4 + r}")
    for t in range(4):
        for r in range(4):
            d = R + t * 4 + r
            a(f"v_add_f32 v{d}, v{d}, v{R + 32 + t * 4 + r}")
    a("s_waitcnt vmcnt(0)")
    for p in range(2):
        for e in range(0, 8, 2):
            y = R + 8 * p + e
            a(f"v_cvt_pk_bf16_f32 v40, v{y}, v{y + 1}")
            a("v_lshlrev_b32 v42, 16, v40")
            a("v_and_b32 v43, 0xffff0000, v40")
            a(f"v_mul_f32 v42, v42, v{24 + 8 * p + e}")
            a(f"v_mul_f32 v43, v43, v{24 + 8 * p + e + 1}")
            a("v_cvt_pk_bf16_f32 v40, v42, v43")
            a("v_lshlrev_b32 v42, 16, v40")
            a("v_and_b32 v43, 0xffff0000, v40")
            xr = 16 + 4 * p + e // 2
            a(f"v_lshlrev_b32 v44, 16, v{xr}")
            a(f"v_and_b32 v45, 0xffff0000, v{xr}")
            a("v_add_f32 v42, v42, v44")
            a("v_add_f32 v43, v43, v45")
            a(f"v_cvt_pk_bf16_f32 v{48 + 4 * p + e // 2}, v42, v43")
    if out_to_dout:
        a(f"buffer_store_dwordx4 {vr(48)}, v6, s[48:51], 0 offen")
        a(f"buffer_store_dwordx4 {vr(52)}, v6, s[48:51], 0 offen offset:64")
    else:
        a(f"buffer_store_dwordx4 {vr(48)}, v5, s[16:19], s29 offen")
        a(f"buffer_store_dwordx4 {vr(52)}, v5, s[16:19], s29 offen offset:1024")
        a("v_mov_b32 v40, 0x3f803f80")
        for r in range(41, 45):
            a(f"v_mov_b32 v{r}, 0")
        a("s_nop 0")
        for i in range(8):
            a(f"v_dot2_f32_bf16 v{41 + (i & 1)}, v{48 + i}, v40, v{41 + (i & 1)}")
            a(f"v_dot2_f32_bf16 v{43 + (i & 1)}, v{48 + i}, v{48 + i}, v{43 + (i & 1)}")
        a.nop(3)
        a("v_add_f32 v46, v41, v42")
        a("v_add_f32 v47, v43, v44")
        for op in ("v_permlane16_swap_b32", "v_permlane32_swap_b32"):
            a("v_mov_b32 v41, v46")
            a("v_mov_b32 v42, v47")
            a.nop(2)
            a(f"{op} v46, v41")
            a(f"{op} v47, v42")
            a.nop(2)
            a("v_add_f32 v46, v46, v41")
            a("v_add_f32 v47, v47, v42")
        a("v_lshlrev_b32 v41, 6, v3")
        a("s_lshl_b32 s27, s26, 6")
        a("s_lshl_b32 s28, s8, 3")
        a("s_add_u32 s27, s27, s28")
        a(f"s_add_u32 s27, s27, {WS_ST:#x}")
        a("buffer_store_dwordx2 v[46:47], v41, s[16:19], s27 offen")
    a.stamp(6)
    a("s_waitcnt vmcnt(0)")
    a.stamp(7)
    a.stamp_flush("s[16:19]", 8, 5 if out_to_dout else 3)
    a.label(L_end)
    a("s_endpgm")
    return kd(name, 192, 32 * depth)


def geglu_mt(a, ACC, mt, packed, tb):
    g0 = ACC + mt * 16
    u0 = g0 + 8
    ob = 40 + 4 * (mt & 1)
    for e in range(0, 8, 2):
        g = g0 + e
        u = u0 + e
        b = tb + 8 * ((e >> 1) & 1)
        p0, p1, a0, a1, b0, b1, t0, t1 = range(b, b + 8)
        a(f"v_cvt_pk_bf16_f32 v{p0}, v{g}, v{g + 1}")
        a(f"v_cvt_pk_bf16_f32 v{p1}, v{u}, v{u + 1}")
        a(f"v_lshlrev_b32 v{a0}, 16, v{p0}")
        a(f"v_and_b32 v{a1}, 0xffff0000, v{p0}")
        a(f"v_lshlrev_b32 v{b0}, 16, v{p1}")
        a(f"v_and_b32 v{b1}, 0xffff0000, v{p1}")
        if packed:
            a(f"v_pk_mul_f32 {vr(t0, 2)}, {vr(a0, 2)}, {vr(a0, 2)}")
            a(f"v_pk_fma_f32 {vr(t0, 2)}, {vr(t0, 2)}, v[58:59], v[56:57]")
            a(f"v_pk_mul_f32 {vr(t0, 2)}, {vr(t0, 2)}, {vr(a0, 2)}")
        else:
            a(f"v_mul_f32 v{t0}, v{a0}, v{a0}")
            a(f"v_mul_f32 v{t1}, v{a1}, v{a1}")
            a(f"v_fma_f32 v{t0}, v{t0}, v58, v56")
            a(f"v_fma_f32 v{t1}, v{t1}, v58, v56")
            a(f"v_mul_f32 v{t0}, v{t0}, v{a0}")
            a(f"v_mul_f32 v{t1}, v{t1}, v{a1}")
        a(f"v_exp_f32 v{t0}, v{t0}")
        a(f"v_exp_f32 v{t1}, v{t1}")
        a(f"v_add_f32 v{t0}, 1.0, v{t0}")
        a("s_nop 0")
        a(f"v_add_f32 v{t1}, 1.0, v{t1}")
        a(f"v_rcp_f32 v{t0}, v{t0}")
        a(f"v_rcp_f32 v{t1}, v{t1}")
        a(f"v_mul_f32 v{t0}, v{t0}, v{a0}")
        a("s_nop 0")
        a(f"v_mul_f32 v{t1}, v{t1}, v{a1}")
        a(f"v_cvt_pk_bf16_f32 v{p0}, v{t0}, v{t1}")
        a(f"v_lshlrev_b32 v{t0}, 16, v{p0}")
        a(f"v_and_b32 v{t1}, 0xffff0000, v{p0}")
        if packed:
            a(f"v_pk_mul_f32 {vr(t0, 2)}, {vr(t0, 2)}, {vr(b0, 2)}")
        else:
            a(f"v_mul_f32 v{t0}, v{t0}, v{b0}")
            a(f"v_mul_f32 v{t1}, v{t1}, v{b1}")
        a(f"v_cvt_pk_bf16_f32 v{ob + e // 2}, v{t0}, v{t1}")
    a(f"buffer_store_dwordx4 {vr(ob)}, v5, s[16:19], s30 offen")
    a("s_add_u32 s30, s30, 57344")


def gen_k4(a):
    name = "k4_ffn1_kernel"
    a.kernel_begin(name)
    L_end = "k4_end"
    a("s_cmp_ge_u32 s2, 224")
    a(f"s_cbranch_scc1 {L_end}")
    a.stamp(0)
    a("s_load_dwordx2 s[6:7], s[0:1], 88")
    a("v_lshrrev_b32 v1, 6, v0")
    a("v_and_b32 v2, 63, v0")
    a("s_nop 0")
    a("v_readfirstlane_b32 s3, v1")
    a("v_and_b32 v3, 15, v2")
    a("v_lshrrev_b32 v4, 4, v2")
    a("v_lshlrev_b32 v5, 4, v2")
    a("s_lshr_b32 s10, s2, 3")
    a("s_mul_i32 s8, s10, 149797")
    a("s_lshr_b32 s9, s8, 20")
    a("s_mul_i32 s8, s9, 7")
    a("s_sub_u32 s8, s10, s8")
    a("s_and_b32 s10, s2, 1")
    a("s_mul_i32 s10, s10, 7")
    a("s_add_u32 s8, s8, s10")
    a("s_and_b32 s10, s2, 6")
    a("s_lshl_b32 s10, s10, 1")
    a("s_add_u32 s9, s9, s10")
    a("v_lshlrev_b32 v6, 6, v3")
    a("v_lshl_add_u32 v6, v4, 4, v6")
    a("s_waitcnt lgkmcnt(0)")
    a.srd(16, 6, WS_SIZE)
    a("s_lshl_b32 s10, s9, 3")
    a("s_add_u32 s10, s10, s3")
    a("s_mul_i32 s12, s10, 14336")
    a(f"s_add_u32 s12, s12, {WS_X2:#x}")
    a("s_add_u32 s13, s12, 57344")
    a("s_lshl_b32 s15, s10, 10")
    a(f"s_add_u32 s15, s15, {WS_ST:#x}")
    X0, X1 = 64, 128
    VM = 224
    ST = 240
    a.t(f"buffer_load_dwordx4 {vr(ST)}, v6, s[16:19], s15 offen", "st0")
    a(f"s_mov_b32 s14, {WS_MOD + 1344 * 4}")
    for r in range(4):
        a.t(f"buffer_load_dwordx4 {vr(VM + 4 * r)}, v5, s[16:19], s14 offen offset:{r * 1024}", "mod")
    for ks in range(14):
        a.t(f"buffer_load_dwordx4 {vr(X0 + 4 * ks)}, v5, s[16:19], s12 offen offset:{(ks % 4) * 1024}", f"x{ks}")
        if ks % 4 == 3:
            a("s_add_u32 s12, s12, 4096")
    a("s_lshl_b32 s21, s8, 2")
    a("s_add_u32 s21, s21, s3")
    a("s_mul_i32 s22, s21, 57344")
    a(f"s_add_u32 s22, s22, {WS_WGU:#x}")
    groups = []

    def grp(f):
        old = a.capture()
        f()
        groups.append(a.release(old))

    def bload(ks, q):
        a.t(f"buffer_load_dwordx4 {ar(ks * 16 + 4 * q)}, v5, s[16:19], s22 offen offset:{q * 1024}", f"b{ks}")
        if q == 3:
            a("s_add_u32 s22, s22, 4096")

    def x1load(ks):
        a.t(f"buffer_load_dwordx4 {vr(X1 + 4 * ks)}, v5, s[16:19], s13 offen offset:{(ks % 4) * 1024}", f"y{ks}")
        if ks % 4 == 3:
            a("s_add_u32 s13, s13, 4096")

    for ks in range(4):
        for q in range(4):
            grp(lambda: bload(ks, q))
    grp(lambda: a.t(f"buffer_load_dwordx4 {vr(ST + 4)}, v6, s[16:19], s15 offen offset:4096" if False else
                    f"buffer_load_dwordx4 {vr(ST + 4)}, v6, s[16:19], s23 offen", "st1"))
    for ks in range(14):
        grp(lambda: x1load(ks))
    for ks in range(4, 14):
        for q in range(4):
            grp(lambda: bload(ks, q))
    a("s_add_u32 s23, s15, 4096")
    NPRE = 8
    for g_ in groups[:NPRE]:
        a.lines.extend(g_)
    LDS_MOD = 114688
    a("s_lshl_b32 s25, s3, 12")
    a(f"s_add_u32 s25, s25, {LDS_MOD}")
    a("v_add_u32 v8, s25, v5")
    a("v_lshlrev_b32 v9, 5, v4")
    a("v_add_u32 v9, s25, v9")
    a("s_mul_i32 s26, s3, 14336")
    a("v_add_u32 v10, s26, v5")
    a("v_add_u32 v12, 57344, v10")
    a("v_add_u32 v11, 57344, v5")
    a("v_cmp_eq_u32 vcc, 3, v4")
    a.stamp(1)

    def stats(base, tag, rs):
        a.wait(tag)
        a(f"v_cndmask_b32 v{base + 2}, v{base + 2}, 0, vcc")
        a(f"v_cndmask_b32 v{base + 3}, v{base + 3}, 0, vcc")
        a(f"v_add_f32 v{base}, v{base}, v{base + 2}")
        a(f"v_add_f32 v{base + 1}, v{base + 1}, v{base + 3}")
        ln_finalize(a, base, base + 1, base + 2, base + 3, rs)

    old = a.capture()
    stats(ST, "st0", 248)
    a.wait("mod")
    for r in range(4):
        a.t(f"ds_write_b128 v8, {vr(VM + 4 * r)} offset:{r * 1024}", "modw")
    a.wait("modw")
    ln_norm(a, X0, 248, "v9", "v10", 0, True, "x", "la")
    pa = a.release(old)
    a.lines.extend(merge_any(pa, groups[NPRE:], 5))
    a.wait("law")
    a.stamp(2)
    a("s_barrier")
    a.stamp(3)
    ACC = 64
    AF = 192

    def mfma_stream(mt0, vbase, uid):
        for mt in range(4):
            a.t(f"ds_read_b128 {vr(AF + 4 * mt)}, {vbase} offset:{mt * 14336}", f"{uid}0")
        for ks in range(14):
            cur = AF + 16 * (ks & 1)
            nxt = AF + 16 * ((ks + 1) & 1)
            if ks < 13:
                for mt in range(4):
                    a.t(f"ds_read_b128 {vr(nxt + 4 * mt)}, {vbase} offset:{mt * 14336 + (ks + 1) * 1024}", f"{uid}{ks + 1}")
            if mt0 == 0:
                a.wait(f"{uid}{ks}", f"b{ks}")
            else:
                a.wait(f"{uid}{ks}")
            for mt in range(4):
                for q in range(4):
                    acc = vr(ACC + ((mt0 + mt) * 4 + q) * 4)
                    c = "0" if ks == 0 else acc
                    a(f"v_mfma_f32_16x16x32_bf16 {acc}, {ar(ks * 16 + 4 * q)}, {vr(cur + 4 * mt)}, {c}")

    old = a.capture()
    mfma_stream(0, "v5", "fa")
    pm = a.release(old)
    old = a.capture()
    stats(ST + 4, "st1", 252)
    ln_norm(a, X1, 252, "v9", "v12", 0, False, "y", "lb")
    pl = a.release(old)
    a.lines.extend(merge(pm, pl, 2.3))
    a.wait("lbw")
    a.stamp(4)
    a("s_barrier")
    a.stamp(5)
    k1 = -2.0 * 0.7978845608028654 * 1.4426950408889634
    k2 = k1 * 0.044715
    a(f"v_mov_b32 v56, {f32bits(k1):#x}")
    a(f"v_mov_b32 v57, {f32bits(k1):#x}")
    a(f"v_mov_b32 v58, {f32bits(k2):#x}")
    a(f"v_mov_b32 v59, {f32bits(k2):#x}")
    a("s_lshl_b32 s30, s9, 3")
    a("s_mul_i32 s30, s30, 56")
    a("s_add_u32 s30, s30, s21")
    a("s_lshl_b32 s30, s30, 10")
    a(f"s_add_u32 s30, s30, {WS_HH:#x}")
    a.nop(4)
    old = a.capture()
    mfma_stream(4, "v11", "fb")
    pm = a.release(old)
    old = a.capture()
    for mt in range(4):
        geglu_mt(a, ACC, mt, False, 16)
    pg = a.release(old)
    a.lines.extend(merge(pm, pg, 2.0))
    a.stamp(6)
    a.nop(10)
    for mt in range(4, 8):
        geglu_mt(a, ACC, mt, True, 16)
    a.stamp(7)
    if STAMPS:
        a("s_waitcnt vmcnt(0)")
    a.stamp(8)
    a.stamp_flush("s[16:19]", 9, 4)
    a.label(L_end)
    a("s_endpgm")
    return kd(name, 256, 224)


def main():
    a = Asm()
    hdr = open("cdna_kernels/" + NAME + ".s.ref").read().split("\n")
    head = [l for l in hdr if l.startswith(";") and "@launch" not in l and "Override" not in l and "grid=ceil" not in l]
    out = "\n".join(head) + "\n"
    out += "; @launch kernel=k0_prep_kernel grid=(256,1,1) block=(512,1,1) lds=61440\n"
    out += "; @launch kernel=k1_qkv_kernel grid=(256,1,1) block=(256,1,1) lds=73728\n"
    out += "; @launch kernel=k2_attn_kernel grid=(256,1,1) block=(256,1,1) lds=0\n"
    out += "; @launch kernel=k3_wo_kernel grid=(224,1,1) block=(256,1,1) lds=65536\n"
    out += "; @launch kernel=k4_ffn1_kernel grid=(224,1,1) block=(256,1,1) lds=131072\n"
    out += "; @launch kernel=k5_ffn2_kernel grid=(224,1,1) block=(256,1,1) lds=65536\n"
    out += '.amdgcn_target "amdgcn-amd-amdhsa--gfx950"\n.text\n'
    kds = []
    kds.append(gen_k0(a))
    kds.append(gen_k1(a))
    kds.append(gen_k2(a))
    kds.append(gen_gemm_res(a, "k3_wo_kernel", 4, 16, WS_OP, WS_WO, True, 896, False, 4))
    kds.append(gen_k4(a))
    kds.append(gen_gemm_res(a, "k5_ffn2_kernel", 14, 56, WS_HH, WS_WD, False, 2240, True, 7))
    out += a.text()
    out += '.section .rodata,"a"\n'
    out += "".join(kds)
    if STAMPS:
        open("stamps.s", "w").write(out)
    else:
        open("cdna_kernels/" + NAME + ".s", "w").write(out)


if __name__ == "__main__":
    main()
```

```python
import struct
import sys
import os

STAMPS = len(sys.argv) > 1 and sys.argv[1] == "stamps"
NAME = "adaLN_cond__sliding_block__glu_gated_geglu__prompt"
OUT = os.environ.get("OUT", "v4.s")
SOUT = os.environ.get("SOUT", "stamps.s")

WS_MOD = 0x0
WS_WQKV = 0x100000
WS_WO = 0x300000
WS_WGU = 0x400000
WS_WD = 0x800000
WS_Q = 0xA00000
WS_K = 0xC00000
WS_VT = 0xE00000
WS_OP = 0x1000000
WS_X2 = 0x1200000
WS_HH = 0x1400000
WS_XH = 0x1C00000
WS_ST = 0x1E00000
WS_X2S = 0x2000000
WS_MODB = 0x8000
WS_SIZE = 0x3000000
WGU_CB = 29 * 7168

KA_X, KA_WQKV, KA_WO, KA_BX, KA_WG, KA_WU, KA_WD, KA_C, KA_WMOD, KA_OUT, KA_DBG, KA_WS = [8 * i for i in range(12)]


def f32bits(x):
    return struct.unpack("<I", struct.pack("<f", x))[0]


class Asm:
    def __init__(self):
        self.lines = []
        self.uid = 0

    def __call__(self, s):
        self.lines.append("    " + s)

    def label(self, l):
        self.lines.append(l + ":")

    def newlabel(self, p="L"):
        self.uid += 1
        return f"{p}_{self.uid}"

    def raw(self, s):
        self.lines.append(s)

    def nop(self, n):
        while n > 0:
            k = min(n, 16)
            self(f"s_nop {k - 1}")
            n -= k

    def srd(self, d, b, nbytes):
        self(f"s_mov_b32 s{d}, s{b}")
        self(f"s_and_b32 s{d + 1}, s{b + 1}, 0xffff")
        self(f"s_mov_b32 s{d + 2}, {nbytes:#x}")
        self(f"s_mov_b32 s{d + 3}, 0x00020000")

    def stamp(self, i):
        if not STAMPS:
            return
        self(f"s_memtime s[{70 + 2 * i}:{71 + 2 * i}]")
        self("s_waitcnt lgkmcnt(0)")

    def stamp_flush(self, srd, n, kidx, wsh=2):
        if not STAMPS:
            return
        if wsh == 3:
            self("s_and_b32 s3, s3, 3")
        self("s_lshl_b32 s68, s2, 2")
        self("s_add_u32 s68, s68, s3")
        self("s_lshl_b32 s68, s68, 6")
        self(f"s_add_u32 s68, s68, {0x1B00000 + kidx * 0x10000:#x}")
        self("v_mov_b32 v1, 0")
        for i in range(n):
            self(f"v_mov_b32 v2, s{70 + 2 * i}")
            self(f"buffer_store_dword v2, v1, {srd}, s68 offen offset:{i * 4}")
            self("s_nop 1")

    def kernel_begin(self, name):
        self.raw(f".globl {name}")
        self.raw(".p2align 8")
        self.raw(f".type {name},@function")
        self.label(name)

    def t(self, s, tag):
        self.lines.append("    " + s + " ;@T:" + tag)

    def wait(self, *tags):
        self.lines.append("@WAIT " + " ".join(tags))

    def capture(self):
        old = self.lines
        self.lines = []
        return old

    def release(self, old):
        cap = self.lines
        self.lines = old
        return cap

    def text(self):
        out = []
        vm, ds = [], []
        snaps = {}
        for l in self.lines:
            st = l.strip()
            if st.startswith("@SNAP"):
                snaps[st.split()[1]] = (list(vm), list(ds))
                continue
            if st.startswith("@RESTORE"):
                a_, b_ = snaps[st.split()[1]]
                vm, ds = list(a_), list(b_)
                continue
            if st.startswith("@WAIT"):
                tags = st.split()[1:]
                nv = nd = None
                for tg in tags:
                    iv = max([i for i, x in enumerate(vm) if x == tg], default=None)
                    idd = max([i for i, x in enumerate(ds) if x == tg], default=None)
                    assert iv is not None or idd is not None, tg
                    if iv is not None:
                        n = len(vm) - 1 - iv
                        nv = n if nv is None else min(nv, n)
                    if idd is not None:
                        n = len(ds) - 1 - idd
                        nd = n if nd is None else min(nd, n)
                w = "    s_waitcnt"
                if nv is not None:
                    w += f" vmcnt({min(nv, 63)})"
                if nd is not None:
                    w += f" lgkmcnt({min(nd, 15)})"
                out.append(w)
                continue
            tag = None
            if ";@T:" in l:
                l, tag = l.split(" ;@T:")
            if st.startswith("buffer_") or st.startswith("global_"):
                vm.append(tag)
            elif st.startswith("ds_"):
                ds.append(tag)
            out.append(l)
        return "\n".join(out) + "\n"


def merge(primary, filler, per, key="v_mfma"):
    out = []
    fi = 0
    acc = 0.0
    for l in primary:
        out.append(l)
        if l.strip().startswith(key):
            acc += per
            while acc >= 1.0 and fi < len(filler):
                f = filler[fi]
                fi += 1
                out.append(f)
                if not f.strip().startswith("@"):
                    acc -= 1.0
    out.extend(filler[fi:])
    return out


def merge_any(primary, filler, every):
    out = []
    fi = 0
    n = 0
    for l in primary:
        out.append(l)
        if not l.strip().startswith("@"):
            n += 1
            if n % every == 0 and fi < len(filler):
                out.extend(filler[fi])
                fi += 1
    for f in filler[fi:]:
        out.extend(f)
    return out


def kd(name, vgpr, agpr, sgpr=102):
    acc = (vgpr + 3) // 4 * 4
    nfv = acc + agpr if agpr else vgpr
    return f""".p2align 6
.amdhsa_kernel {name}
  .amdhsa_next_free_vgpr {nfv}
  .amdhsa_next_free_sgpr {sgpr}
  .amdhsa_accum_offset {acc}
  .amdhsa_group_segment_fixed_size 0
  .amdhsa_kernarg_size 96
  .amdhsa_user_sgpr_count 2
  .amdhsa_user_sgpr_kernarg_segment_ptr 1
  .amdhsa_system_sgpr_workgroup_id_x 1
.end_amdhsa_kernel
"""


def vr(b, n=4):
    return f"v[{b}:{b + n - 1}]"


def ar(b, n=4):
    return f"a[{b}:{b + n - 1}]"


def round_bf16_f32(a, dst, src, tmp=None):
    a(f"v_cvt_pk_bf16_f32 {dst}, {src}, {src}")
    a(f"v_lshlrev_b32 {dst}, 16, {dst}")


def gen_k0(a):
    name = "k0_prep_kernel"
    a.kernel_begin(name)
    L_end = "k0_end"
    a("s_cmp_ge_u32 s2, 256")
    a(f"s_cbranch_scc1 {L_end}")
    a.stamp(0)
    a("s_load_dwordx4 s[4:7], s[0:1], 8")
    a("s_load_dwordx4 s[8:11], s[0:1], 32")
    a("s_load_dwordx2 s[12:13], s[0:1], 48")
    a("s_load_dwordx4 s[16:19], s[0:1], 56")
    a("s_load_dwordx2 s[14:15], s[0:1], 88")
    a("s_load_dwordx2 s[34:35], s[0:1], 0")
    a("v_lshrrev_b32 v1, 6, v0")
    a("v_and_b32 v2, 63, v0")
    a("s_nop 0")
    a("v_readfirstlane_b32 s3, v1")
    a("v_and_b32 v3, 15, v2")
    a("v_lshrrev_b32 v4, 4, v2")
    a("v_lshlrev_b32 v7, 4, v2")
    a("s_waitcnt lgkmcnt(0)")
    a.srd(40, 14, WS_SIZE)
    a("s_cmp_lt_u32 s2, 21")
    a("s_cbranch_scc1 k0_mod")
    a("s_cmp_ge_u32 s2, 224")
    a("s_cbranch_scc1 k0_xh")
    STR = 144
    a("s_sub_u32 s20, s2, 21")
    a("s_lshl_b32 s20, s20, 3")
    a("s_add_u32 s20, s20, s3")
    a("v_lshrrev_b32 v5, 3, v2")
    a("v_and_b32 v6, 7, v2")
    a(f"s_mul_i32 s28, s3, {32 * STR}")
    a(f"v_mul_u32_u24 v8, {STR}, v5")
    a("v_lshl_add_u32 v8, v6, 4, v8")
    a("v_add_u32 v8, s28, v8")
    a("v_bfe_u32 v9, v2, 2, 2")
    a("v_lshl_add_u32 v9, v4, 3, v9")
    a(f"v_mul_u32_u24 v9, {STR}, v9")
    a("v_add_u32 v9, s28, v9")
    a("v_and_b32 v11, 3, v2")
    a("v_lshl_add_u32 v12, v11, 4, v9")
    a("v_lshlrev_b32 v6, 4, v6")
    a("v_mov_b32 v18, 0x7fffffff")
    a("s_cmp_lt_u32 s20, 336")
    a("s_cbranch_scc1 k0_pk_qkv")
    a("s_cmp_lt_u32 s20, 448")
    a("s_cbranch_scc1 k0_pk_wo")
    a("s_cmp_lt_u32 s20, 1232")
    a("s_cbranch_scc1 k0_pk_wgu")
    a("s_branch k0_pk_wd")

    def divconst(dst_q, dst_r, src, d, tmp):
        m = (1 << 20) // d + 1
        a(f"s_mul_i32 s{tmp}, s{src}, {m}")
        a(f"s_lshr_b32 s{dst_q}, s{tmp}, 20")
        a(f"s_mul_i32 s{tmp}, s{dst_q}, {d}")
        a(f"s_sub_u32 s{dst_r}, s{src}, s{tmp}")

    def pack_body(rs, dst_offs, qkv=False, alt_last=False):
        for n in range(4):
            vo = 14 if (alt_last and n == 3) else 10
            a(f"buffer_load_dwordx4 {vr(20 + 4 * n)}, v{vo}, s[44:47], s26 offen")
            if n < 3:
                a(f"s_add_u32 s26, s26, {8 * rs}")
        for n in range(4):
            a(f"s_waitcnt vmcnt({3 - n})")
            a(f"ds_write_b128 v8, {vr(20 + 4 * n)} offset:{n * 8 * STR}")
        a("s_waitcnt lgkmcnt(0)")
        for t in range(4):
            for hf in range(2):
                if qkv:
                    av, off = [(13, 0), (15, 0), (13, 56), (16, 0)][t]
                else:
                    av, off = 12, (t >> 1) * 64 + (t & 1) * 8
                a(f"ds_read_b64_tr_b16 {vr(40 + 4 * t + 2 * hf, 2)}, v{av} offset:{off + hf * 4 * STR}")
        a.stamp(1)
        for t in range(4):
            a(f"s_waitcnt lgkmcnt({6 - 2 * t})")
            so, io = dst_offs[t]
            a(f"buffer_store_dwordx4 {vr(40 + 4 * t)}, v7, s[40:43], {so} offen offset:{io}")
        a.stamp(2)
        if STAMPS:
            a("s_waitcnt vmcnt(0)")
        a.stamp(3)
        a.stamp(4)
        a.stamp_flush("s[40:43]", 5, 0, 3)
        a(f"s_branch {L_end}")

    a.label("k0_pk_qkv")
    a.srd(44, 4, 448 * 1344 * 2)
    divconst(21, 22, 20, 24, 23)
    a("s_mul_i32 s24, s22, 112")
    a("s_mul_i32 s26, s21, 86016")
    a("s_add_u32 s26, s26, s24")
    a("v_mul_u32_u24 v10, 2688, v5")
    a("v_add_u32 v10, v10, v6")
    a("v_cmp_eq_u32 vcc, 112, v6")
    a("v_lshl_add_u32 v13, v11, 3, v9")
    a("v_add_u32 v15, 32, v13")
    a("v_cndmask_b32 v10, v10, v18, vcc")
    a("v_add_u32 v16, 88, v13")
    a("v_add_u32 v17, 112, v9")
    a("v_cmp_eq_u32 vcc, 3, v11")
    a("s_mul_i32 s30, s22, 56")
    a("s_add_u32 s30, s30, s21")
    a("v_cndmask_b32 v15, v15, v17, vcc")
    a("v_cndmask_b32 v16, v16, v17, vcc")
    a("s_lshl_b32 s30, s30, 10")
    a(f"s_add_u32 s30, s30, {WS_WQKV:#x}")
    for t in range(1, 4):
        a(f"s_add_u32 s{30 + t}, s30, {t * 14336}")
    pack_body(2688, [("s30", 0), ("s31", 0), ("s32", 0), ("s33", 0)], qkv=True)

    a.label("k0_pk_wo")
    a.srd(44, 6, 448 * 448 * 2)
    a("s_sub_u32 s20, s20, 336")
    divconst(21, 22, 20, 7, 23)
    a("s_mul_i32 s26, s21, 25088")
    a("s_lshl_b32 s24, s22, 7")
    a("s_add_u32 s26, s26, s24")
    a("v_mul_u32_u24 v10, 896, v5")
    a("v_add_u32 v10, v10, v6")
    a("v_cmp_le_u32 vcc, 4, v5")
    a("s_lshl_b32 s30, s22, 4")
    a("s_add_u32 s30, s30, s21")
    a("v_cndmask_b32 v14, v10, v18, vcc")
    a("s_lshl_b32 s30, s30, 12")
    a(f"s_add_u32 s30, s30, {WS_WO:#x}")
    pack_body(896, [("s30", t * 1024) for t in range(4)], alt_last=True)

    a.label("k0_pk_wgu")
    a.srd(44, 8, 448 * 1792 * 2)
    a.srd(48, 10, 448 * 1792 * 2)
    a("s_sub_u32 s20, s20, 448")
    divconst(21, 22, 20, 28, 23)
    a("s_mul_i32 s26, s21, 57344")
    a("s_lshl_b32 s24, s22, 7")
    a("s_add_u32 s26, s26, s24")
    a("s_add_u32 s27, s26, 28672")
    a("v_mul_u32_u24 v10, 3584, v5")
    a("v_add_u32 v10, v10, v6")
    a(f"buffer_load_dwordx4 {vr(20)}, v10, s[44:47], s26 offen")
    a(f"buffer_load_dwordx4 {vr(24)}, v10, s[44:47], s27 offen")
    a(f"buffer_load_dwordx4 {vr(28)}, v10, s[48:51], s26 offen")
    a(f"buffer_load_dwordx4 {vr(32)}, v10, s[48:51], s27 offen")
    a("v_and_b32 v13, 1, v4")
    a("v_lshrrev_b32 v14, 1, v4")
    a("v_lshlrev_b32 v13, 4, v13")
    a("v_lshl_add_u32 v13, v14, 3, v13")
    a("v_bfe_u32 v14, v2, 2, 2")
    a("v_add_u32 v13, v13, v14")
    a(f"v_mul_u32_u24 v13, {STR}, v13")
    a("v_and_b32 v14, 1, v11")
    a("v_lshl_add_u32 v13, v14, 4, v13")
    a("v_lshrrev_b32 v14, 1, v11")
    a("v_lshl_add_u32 v13, v14, 3, v13")
    a("v_add_u32 v13, s28, v13")
    a("s_mul_i32 s25, s21, 7168")
    a(f"s_add_u32 s25, s25, {WS_WGU:#x}")
    a("s_lshl_b32 s24, s22, 2")
    for t in range(4):
        a(f"s_add_u32 s20, s24, {t}")
        divconst(21, 22, 20, 7, 23)
        a(f"s_mul_i32 s{30 + t}, s21, {WGU_CB}")
        a("s_lshl_b32 s22, s22, 10")
        a(f"s_add_u32 s{30 + t}, s{30 + t}, s22")
        a(f"s_add_u32 s{30 + t}, s{30 + t}, s25")
    for n in range(4):
        a(f"s_waitcnt vmcnt({3 - n})")
        a(f"ds_write_b128 v8, {vr(20 + 4 * n)} offset:{n * 8 * STR}")
    a("s_waitcnt lgkmcnt(0)")
    for t in range(4):
        for hf in range(2):
            a(f"ds_read_b64_tr_b16 {vr(40 + 4 * t + 2 * hf, 2)}, v13 offset:{t * 32 + hf * 4 * STR}")
    for t in range(4):
        a(f"s_waitcnt lgkmcnt({6 - 2 * t})")
        a(f"buffer_store_dwordx4 {vr(40 + 4 * t)}, v7, s[40:43], s{30 + t} offen")
    a(f"s_branch {L_end}")

    a.label("k0_pk_wd")
    a.srd(44, 12, 1792 * 448 * 2)
    a("s_sub_u32 s20, s20, 1232")
    divconst(21, 22, 20, 7, 23)
    a("s_mul_i32 s26, s21, 28672")
    a("s_lshl_b32 s24, s22, 7")
    a("s_add_u32 s26, s26, s24")
    a("v_mul_u32_u24 v10, 896, v5")
    a("v_add_u32 v10, v10, v6")
    a("s_mul_i32 s30, s22, 56")
    a("s_add_u32 s30, s30, s21")
    a("s_lshl_b32 s30, s30, 12")
    a(f"s_add_u32 s30, s30, {WS_WD:#x}")
    pack_body(896, [("s30", t * 1024) for t in range(4)])

    a.label("k0_xh")
    a("s_cmp_ge_u32 s3, 4")
    a(f"s_cbranch_scc1 {L_end}")
    a.srd(44, 34, 2048 * 896)
    a("s_sub_u32 s20, s2, 224")
    a("s_lshr_b32 s20, s20, 3")
    a("s_lshl_b32 s20, s20, 2")
    a("s_add_u32 s20, s20, s3")
    a("s_and_b32 s21, s2, 7")
    a("s_lshl_b32 s21, s21, 4")
    a("s_add_u32 s20, s20, s21")
    a("s_mul_i32 s26, s20, 14336")
    a(f"s_add_u32 s30, s26, {WS_XH:#x}")
    VX = 64
    for n in range(14):
        a(f"buffer_load_dwordx4 {vr(VX + 4 * n)}, v7, s[44:47], s26 offen offset:{(n % 4) * 1024}")
        if n % 4 == 3:
            a("s_add_u32 s26, s26, 4096")
    a("s_mul_i32 s28, s3, 14848")
    for n in range(14):
        a(f"v_add_u32 v{20 + n}, {64 * n}, v2")
        a(f"v_mul_u32_u24 v34, 1171, v{20 + n}")
        a("v_lshrrev_b32 v34, 16, v34")
        a(f"v_lshlrev_b32 v{20 + n}, 4, v{20 + n}")
        a(f"v_lshl_add_u32 v{20 + n}, v34, 5, v{20 + n}")
        a(f"v_add_u32 v{20 + n}, s28, v{20 + n}")
    a("v_mul_u32_u24 v9, 928, v3")
    a("v_lshl_add_u32 v9, v4, 4, v9")
    a("v_add_u32 v9, s28, v9")
    for n in range(14):
        a(f"s_waitcnt vmcnt({13 - n})")
        a(f"ds_write_b128 v{20 + n}, {vr(VX + 4 * n)}")
    a("s_waitcnt lgkmcnt(0)")
    for ks in range(14):
        a(f"ds_read_b128 {vr(VX + 4 * ks)}, v9 offset:{ks * 64}")
    t = 16
    s0, s1, q0, q1, ones = t, t + 1, t + 2, t + 3, t + 4
    a(f"v_mov_b32 v{ones}, 0x3f803f80")
    for r in (s0, s1, q0, q1):
        a(f"v_mov_b32 v{r}, 0")
    for i in range(56):
        if i % 4 == 0:
            a(f"s_waitcnt lgkmcnt({13 - i // 4})")
        x = VX + i
        sx = s0 if (i & 1) == 0 else s1
        qx = q0 if (i & 1) == 0 else q1
        a(f"v_dot2_f32_bf16 v{sx}, v{x}, v{ones}, v{sx}")
        a(f"v_dot2_f32_bf16 v{qx}, v{x}, v{x}, v{qx}")
    a.nop(3)
    a(f"v_add_f32 v{s0}, v{s0}, v{s1}")
    a(f"v_add_f32 v{q0}, v{q0}, v{q1}")
    ln_finalize(a, s0, q0, s1, q1, 24)
    for ks in range(14):
        yv = 32 + 8 * (ks & 1)
        ov = 48 + 4 * (ks & 3)
        for d in range(4):
            x = VX + 4 * ks + d
            a(f"v_lshlrev_b32 v{yv + 2 * d}, 16, v{x}")
            a(f"v_and_b32 v{yv + 2 * d + 1}, 0xffff0000, v{x}")
        for d in range(4):
            a(f"v_pk_fma_f32 {vr(yv + 2 * d, 2)}, {vr(yv + 2 * d, 2)}, v[24:25], v[26:27]")
        for d in range(4):
            a(f"v_cvt_pk_bf16_f32 v{ov + d}, v{yv + 2 * d}, v{yv + 2 * d + 1}")
        a(f"buffer_store_dwordx4 {vr(ov)}, v7, s[40:43], s30 offen offset:{(ks % 4) * 1024}")
        if ks % 4 == 3:
            a("s_add_u32 s30, s30, 4096")
    a.stamp(1)
    a.stamp(2)
    if STAMPS:
        a("s_waitcnt vmcnt(0)")
    a.stamp(3)
    a.stamp(4)
    a.stamp_flush("s[40:43]", 5, 0, 3)
    a(f"s_branch {L_end}")

    a.label("k0_mod")
    a.srd(44, 16, 896)
    a.srd(48, 18, 448 * 2688 * 2)
    a("s_mul_i32 s20, s3, 56")
    a("v_add_u32 v5, s20, v2")
    a("v_lshlrev_b32 v5, 1, v5")
    a("buffer_load_ushort v6, v5, s[44:47], 0 offen")
    a("s_mul_i32 s21, s20, 5376")
    a("s_lshl_b32 s22, s2, 8")
    a("s_add_u32 s21, s21, s22")
    a("v_mul_u32_u24 v8, 5376, v4")
    a("v_lshl_add_u32 v8, v3, 4, v8")
    for n in range(14):
        a(f"buffer_load_dwordx4 {vr(64 + 4 * n)}, v8, s[48:51], s21 offen")
        if n != 13:
            a("s_add_u32 s21, s21, 21504")
    a("v_lshlrev_b32 v9, 2, v4")
    a.stamp(1)
    a("s_waitcnt vmcnt(14)")
    a("v_lshlrev_b32 v6, 16, v6")
    a("v_mul_f32 v10, 0xbfb8aa3b, v6")
    a("v_exp_f32 v10, v10")
    a("s_nop 0")
    a("v_add_f32 v10, 1.0, v10")
    a("v_rcp_f32 v10, v10")
    a("s_nop 0")
    a("v_mul_f32 v10, v6, v10")
    round_bf16_f32(a, "v10", "v10")
    for n in range(14):
        a(f"v_add_u32 v11, {16 * n}, v9")
        a(f"ds_bpermute_b32 v{20 + n}, v11, v10")
    for j in range(8):
        a(f"v_mov_b32 v{40 + j}, 0")
    a("s_waitcnt lgkmcnt(0)")
    for n in range(14):
        a(f"s_waitcnt vmcnt({13 - n})")
        for d in range(4):
            x = 64 + 4 * n + d
            a(f"v_lshlrev_b32 v12, 16, v{x}")
            a(f"v_and_b32 v13, 0xffff0000, v{x}")
            a(f"v_fmac_f32 v{40 + 2 * d}, v{20 + n}, v12")
            a(f"v_fmac_f32 v{41 + 2 * d}, v{20 + n}, v13")
    a.stamp(2)
    a.nop(2)
    for p_ in range(4):
        a(f"v_permlane32_swap_b32 v{40 + 2 * p_}, v{41 + 2 * p_}")
    a.nop(2)
    for p_ in range(4):
        a(f"v_add_f32 v{50 + p_}, v{40 + 2 * p_}, v{41 + 2 * p_}")
    a.nop(2)
    a("v_permlane16_swap_b32 v50, v51")
    a("v_permlane16_swap_b32 v52, v53")
    a.nop(2)
    a("v_add_f32 v54, v50, v51")
    a("v_add_f32 v55, v52, v53")
    a("v_and_b32 v12, 1, v4")
    a("v_lshlrev_b32 v12, 1, v12")
    a("v_lshrrev_b32 v13, 1, v4")
    a("v_or_b32 v12, v12, v13")
    a("v_lshl_add_u32 v12, v3, 3, v12")
    a("v_lshlrev_b32 v12, 2, v12")
    a("s_lshl_b32 s23, s3, 9")
    a("v_add_u32 v12, s23, v12")
    a("ds_write2_b32 v12, v54, v55 offset0:0 offset1:4")
    a("s_waitcnt lgkmcnt(0)")
    a.stamp(3)
    a("s_barrier")
    a("s_cmp_ge_u32 s3, 2")
    a(f"s_cbranch_scc1 {L_end}")
    a("v_lshlrev_b32 v16, 2, v0")
    for w in range(8):
        a(f"ds_read_b32 v{20 + w}, v16 offset:{w * 512}")
    a("s_waitcnt lgkmcnt(0)")
    a("v_add_f32 v20, v20, v21")
    a("v_add_f32 v22, v22, v23")
    a("v_add_f32 v24, v24, v25")
    a("v_add_f32 v26, v26, v27")
    a("v_add_f32 v20, v20, v22")
    a("v_add_f32 v24, v24, v26")
    a("v_add_f32 v20, v20, v24")
    round_bf16_f32(a, "v20", "v20")
    a("v_add_f32 v21, 1.0, v20")
    round_bf16_f32(a, "v21", "v21")
    a("s_lshl_b32 s24, s2, 7")
    a("v_add_u32 v22, s24, v0")
    a("v_subrev_u32 v23, 448, v22")
    a("v_subrev_u32 v24, 1792, v22")
    a("v_min_u32 v23, v23, v24")
    a("v_cmp_gt_u32 vcc, 448, v23")
    a("s_nop 1")
    a("v_cndmask_b32 v20, v20, v21, vcc")
    a("v_lshlrev_b32 v23, 1, v22")
    a("v_lshlrev_b32 v22, 2, v22")
    a("buffer_store_dword v20, v22, s[40:43], 0 offen")
    a(f"s_mov_b32 s24, {WS_MODB:#x}")
    a("v_lshrrev_b32 v21, 16, v20")
    a("buffer_store_short v21, v23, s[40:43], s24 offen")
    if STAMPS:
        a("s_waitcnt vmcnt(0)")
    a.stamp(4)
    a.stamp_flush("s[40:43]", 5, 0, 3)
    a.label(L_end)
    a("s_endpgm")
    return kd(name, 120, 0)


def ln_finalize(a, s0, q0, s1, q1, rs):
    for op in ("v_permlane16_swap_b32", "v_permlane32_swap_b32"):
        a(f"v_mov_b32 v{s1}, v{s0}")
        a(f"v_mov_b32 v{q1}, v{q0}")
        a.nop(2)
        a(f"{op} v{s0}, v{s1}")
        a(f"{op} v{q0}, v{q1}")
        a.nop(2)
        a(f"v_add_f32 v{s0}, v{s0}, v{s1}")
        a(f"v_add_f32 v{q0}, v{q0}, v{q1}")
    inv = f32bits(1.0 / 448.0)
    mean, var = s1, q1
    a(f"v_mul_f32 v{mean}, {inv:#x}, v{s0}")
    a(f"v_mul_f32 v{var}, {inv:#x}, v{q0}")
    a(f"v_fma_f32 v{var}, -v{mean}, v{mean}, v{var}")
    a(f"v_max_f32 v{var}, 0, v{var}")
    round_bf16_f32(a, f"v{mean}", f"v{mean}")
    round_bf16_f32(a, f"v{var}", f"v{var}")
    a(f"v_add_f32 v{var}, {f32bits(1e-5):#x}, v{var}")
    round_bf16_f32(a, f"v{var}", f"v{var}")
    a(f"v_sqrt_f32 v{var}, v{var}")
    a("s_nop 0")
    round_bf16_f32(a, f"v{var}", f"v{var}")
    a(f"v_rcp_f32 v{rs}, v{var}")
    a("s_nop 0")
    a(f"v_mov_b32 v{rs + 1}, v{rs}")
    a(f"v_mul_f32 v{rs + 2}, v{mean}, v{rs}")
    a(f"v_sub_f32 v{rs + 2}, 0, v{rs + 2}")
    a(f"v_mov_b32 v{rs + 3}, v{rs + 2}")


def ln_norm(a, vx, rs, v_rd_mod, lds_vaddr, lds_off, packed, xtag, uid):
    def rd(ks):
        b = 16 + 16 * (ks & 1)
        a.t(f"ds_read_b128 {vr(b)}, {v_rd_mod} offset:{ks * 128}", f"{uid}m{ks}")
        a.t(f"ds_read_b128 {vr(b + 4)}, {v_rd_mod} offset:{ks * 128 + 16}", f"{uid}m{ks}")
        a.t(f"ds_read_b128 {vr(b + 8)}, {v_rd_mod} offset:{1792 + ks * 128}", f"{uid}m{ks}")
        a.t(f"ds_read_b128 {vr(b + 12)}, {v_rd_mod} offset:{1792 + ks * 128 + 16}", f"{uid}m{ks}")
    rd(0)
    yv = 48
    for ks in range(14):
        sv = 16 + 16 * (ks & 1)
        cv = sv + 8
        ov = 56 + 4 * (ks & 1)
        if ks < 13:
            rd(ks + 1)
        if xtag is not None:
            a.wait(f"{xtag}{ks}")
        for d in range(4):
            x = vx + 4 * ks + d
            a(f"v_lshlrev_b32 v{yv + 2 * d}, 16, v{x}")
            a(f"v_and_b32 v{yv + 2 * d + 1}, 0xffff0000, v{x}")
        if rs is not None:
            if packed:
                for d in range(4):
                    a(f"v_pk_fma_f32 {vr(yv + 2 * d, 2)}, {vr(yv + 2 * d, 2)}, {vr(rs, 2)}, {vr(rs + 2, 2)}")
            else:
                for d in range(8):
                    a(f"v_fma_f32 v{yv + d}, v{yv + d}, v{rs}, v{rs + 2}")
        a.wait(f"{uid}m{ks}")
        if packed:
            for d in range(4):
                a(f"v_pk_fma_f32 {vr(yv + 2 * d, 2)}, {vr(yv + 2 * d, 2)}, {vr(cv + 2 * d, 2)}, {vr(sv + 2 * d, 2)}")
        else:
            for d in range(8):
                a(f"v_fma_f32 v{yv + d}, v{yv + d}, v{cv + d}, v{sv + d}")
        for d in range(4):
            a(f"v_cvt_pk_bf16_f32 v{ov + d}, v{yv + 2 * d}, v{yv + 2 * d + 1}")
        a.t(f"ds_write_b128 {lds_vaddr}, {vr(ov)} offset:{lds_off + ks * 1024}", f"{uid}w")


def gen_k1(a):
    name = "k1_qkv_kernel"
    a.kernel_begin(name)
    L_end = "k1_end"
    a("s_cmp_ge_u32 s2, 256")
    a(f"s_cbranch_scc1 {L_end}")
    a.stamp(0)
    a("s_load_dwordx2 s[6:7], s[0:1], 88")
    a("v_lshrrev_b32 v1, 6, v0")
    a("v_and_b32 v2, 63, v0")
    a("s_nop 0")
    a("v_readfirstlane_b32 s3, v1")
    a("v_and_b32 v3, 15, v2")
    a("v_lshrrev_b32 v4, 4, v2")
    a("v_lshlrev_b32 v5, 4, v2")
    a("s_lshr_b32 s10, s2, 3")
    a("s_and_b32 s8, s10, 7")
    a("s_lshr_b32 s9, s10, 3")
    a("s_and_b32 s11, s2, 7")
    a("s_lshl_b32 s11, s11, 2")
    a("s_add_u32 s9, s9, s11")
    a("s_waitcnt lgkmcnt(0)")
    a.srd(16, 6, WS_SIZE)
    VM = 120
    for r in range(4):
        a.t(f"buffer_load_dwordx4 {vr(VM + 4 * r)}, v5, s[16:19], 0 offen offset:{WS_MOD + r * 1024}", "mod")
    a("s_lshl_b32 s10, s9, 2")
    a("s_add_u32 s10, s10, s3")
    a("s_mul_i32 s12, s10, 14336")
    a(f"s_add_u32 s12, s12, {WS_XH:#x}")
    VX = 64
    for ks in range(14):
        a.t(f"buffer_load_dwordx4 {vr(VX + 4 * ks)}, v5, s[16:19], s12 offen offset:{(ks % 4) * 1024}", f"x{ks}")
        if ks % 4 == 3:
            a("s_add_u32 s12, s12, 4096")
    a("s_mul_i32 s21, s8, 12")
    a("s_mul_i32 s22, s3, 3")
    a("s_add_u32 s21, s21, s22")
    a("s_mul_i32 s22, s21, 14336")
    a(f"s_add_u32 s22, s22, {WS_WQKV:#x}")
    a("s_add_u32 s23, s22, 14336")
    a("s_add_u32 s24, s23, 14336")
    groups = []
    for ks in range(14):
        for j in range(3):
            old = a.capture()
            if ks and ks % 4 == 0:
                a(f"s_add_u32 s{22 + j}, s{22 + j}, 4096")
            a.t(f"buffer_load_dwordx4 {ar((ks * 3 + j) * 4)}, v5, s[16:19], s{22 + j} offen offset:{(ks % 4) * 1024}", f"b{ks}")
            groups.append(a.release(old))
    NPRE = 12
    for g_ in groups[:NPRE]:
        a.lines.extend(g_)
    LDS_MOD = 57344
    a("s_lshl_b32 s25, s3, 12")
    a(f"s_add_u32 s25, s25, {LDS_MOD}")
    a("v_add_u32 v8, s25, v5")
    a("v_lshlrev_b32 v9, 5, v4")
    a("v_add_u32 v9, s25, v9")
    a("s_mul_i32 s26, s3, 14336")
    a("v_add_u32 v10, s26, v5")
    a.stamp(1)
    a.wait("mod")
    a.stamp(2)
    for r in range(4):
        a.t(f"ds_write_b128 v8, {vr(VM + 4 * r)} offset:{r * 1024}", "modw")
    a.wait("modw")
    old = a.capture()
    ln_norm(a, VX, None, "v9", "v10", 0, True, "x", "k1")
    ln = a.release(old)
    a.lines.extend(merge_any(ln, groups[NPRE:], 7))
    a.wait("k1w")
    a.stamp(3)
    a("s_barrier")
    a.stamp(4)
    a.raw("@SNAP k1")
    a("s_cmp_lt_u32 s21, 63")
    a("s_cbranch_scc1 k1_v0")
    a("s_cmp_eq_u32 s21, 63")
    a("s_cbranch_scc1 k1_v1")
    a("s_branch k1_v2")
    ACC = 64
    AF = 112
    for var, types in enumerate((("qk", "qk", "qk"), ("qk", "v", "v"), ("v", "v", "v"))):
        a.label(f"k1_v{var}")
        a.raw("@RESTORE k1")
        for mt in range(4):
            a.t(f"ds_read_b128 {vr(AF + 4 * mt)}, v5 offset:{mt * 14336}", "af0")
        for ks in range(14):
            cur = AF + 16 * (ks & 1)
            nxt = AF + 16 * ((ks + 1) & 1)
            if ks < 13:
                for mt in range(4):
                    a.t(f"ds_read_b128 {vr(nxt + 4 * mt)}, v5 offset:{mt * 14336 + (ks + 1) * 1024}", f"af{ks + 1}")
            a.wait(f"af{ks}", f"b{ks}")
            for mt in range(4):
                for j in range(3):
                    acc = vr(ACC + (mt * 3 + j) * 4)
                    c = "0" if ks == 0 else acc
                    b = ar((ks * 3 + j) * 4)
                    x = vr(cur + 4 * mt)
                    if types[j] == "qk":
                        a(f"v_mfma_f32_16x16x32_bf16 {acc}, {b}, {x}, {c}")
                    else:
                        a(f"v_mfma_f32_16x16x32_bf16 {acc}, {x}, {b}, {c}")
            if ks == 12:
                a("s_lshl_b32 s30, s9, 12")
                a("v_lshrrev_b32 v13, 1, v4")
                a("v_and_b32 v12, 1, v4")
                a("v_lshlrev_b32 v11, 9, v13")
                a("v_lshl_add_u32 v11, v3, 4, v11")
                a("v_lshl_add_u32 v11, v12, 3, v11")
                a("v_add_u32 v11, s30, v11")
                a("v_lshlrev_b32 v12, 5, v12")
                a("v_add_u32 v12, v12, v3")
                a("v_lshlrev_b32 v12, 4, v12")
                a("v_lshlrev_b32 v13, 3, v13")
                a("v_add3_u32 v12, v12, v13, s30")
                a("v_cmp_eq_u32 vcc, 12, v3")
                a("v_mov_b32 v14, 0x3f803f80")
                for j in range(3):
                    a(f"s_add_u32 s31, s21, {j}")
                    a("s_and_b32 s32, s31, 1")
                    a("s_and_b32 s33, s31, 31")
                    a("s_lshr_b32 s33, s33, 1")
                    a("s_lshl_b32 s33, s33, 17")
                    if types[j] == "qk":
                        a("s_lshr_b32 s34, s31, 5")
                        a("s_lshl_b32 s34, s34, 21")
                        a("s_lshl_b32 s32, s32, 10")
                        a("s_add_u32 s33, s33, s34")
                        a("s_add_u32 s33, s33, s32")
                        a(f"s_add_u32 s{36 + j}, s33, {WS_Q:#x}")
                    else:
                        a("s_lshl_b32 s35, s32, 8")
                        a("s_add_u32 s33, s33, s35")
                        a(f"s_add_u32 s{36 + j}, s33, {WS_VT:#x}")
                        a(f"s_mov_b32 s{40 + j}, s32")
        a.stamp(5)
        a.nop(8)
        for mt in range(4):
            for j in range(3):
                acc = ACC + (mt * 3 + j) * 4
                o = 16 + (mt * 3 + j) * 2
                a(f"v_cvt_pk_bf16_f32 v{o}, v{acc}, v{acc + 1}")
                a(f"v_cvt_pk_bf16_f32 v{o + 1}, v{acc + 2}, v{acc + 3}")
        for j in range(3):
            if types[j] == "v":
                lab = a.newlabel("k1_noones")
                a(f"s_cmp_eq_u32 s{40 + j}, 0")
                a(f"s_cbranch_scc1 {lab}")
                for mt in range(4):
                    o = 16 + (mt * 3 + j) * 2
                    a(f"v_cndmask_b32 v{o}, v{o}, v14, vcc")
                    a(f"v_cndmask_b32 v{o + 1}, v{o + 1}, v14, vcc")
                a.label(lab)
        for mt in range(4):
            for j in range(3):
                o = 16 + (mt * 3 + j) * 2
                if types[j] == "qk":
                    a(f"buffer_store_dwordx2 {vr(o, 2)}, v11, s[16:19], s{36 + j} offen offset:{(mt >> 1) * 2048 + (mt & 1) * 256}")
                else:
                    a(f"buffer_store_dwordx2 {vr(o, 2)}, v12, s[16:19], s{36 + j} offen offset:{(mt >> 1) * 2048 + (mt & 1) * 1024}")
        a.stamp(6)
        if STAMPS:
            a("s_waitcnt vmcnt(0)")
        a.stamp(7)
        a.stamp_flush("s[16:19]", 8, 1)
        a(f"s_branch {L_end}")
    a.label(L_end)
    a("s_endpgm")
    return kd(name, 144, 168)


def gen_k2(a):
    name = "k2_attn_kernel"
    a.kernel_begin(name)
    L_end = "k2_end"
    a("s_cmp_ge_u32 s2, 256")
    a(f"s_cbranch_scc1 {L_end}")
    a.stamp(0)
    a("s_load_dwordx2 s[6:7], s[0:1], 88")
    a("v_lshrrev_b32 v1, 6, v0")
    a("v_and_b32 v2, 63, v0")
    a("s_nop 0")
    a("v_readfirstlane_b32 s3, v1")
    a("v_and_b32 v3, 31, v2")
    a("v_lshrrev_b32 v4, 5, v2")
    a("v_lshlrev_b32 v5, 4, v2")
    a("v_lshlrev_b32 v6, 6, v3")
    a("v_lshlrev_b32 v7, 4, v4")
    a("v_add_u32 v6, v6, v7")
    a("s_lshr_b32 s8, s2, 4")
    a("s_and_b32 s9, s2, 7")
    a("s_lshl_b32 s9, s9, 1")
    a("s_bfe_u32 s10, s2, 0x10003")
    a("s_add_u32 s9, s9, s10")
    a("s_lshl_b32 s9, s9, 2")
    a("s_add_u32 s9, s9, s3")
    a("s_waitcnt lgkmcnt(0)")
    a.srd(16, 6, WS_SIZE)
    a("s_lshl_b32 s10, s8, 17")
    a("s_lshl_b32 s11, s9, 11")
    a("s_add_u32 s12, s10, s11")
    a(f"s_add_u32 s12, s12, {WS_Q:#x}")
    QF = 8
    a(f"buffer_load_dwordx4 {vr(QF)}, v5, s[16:19], s12 offen")
    a(f"buffer_load_dwordx4 {vr(QF + 4)}, v5, s[16:19], s12 offen offset:1024")
    for tt in range(9):
        a(f"s_add_i32 s{20 + tt}, s9, {tt - 8}")
        a(f"s_max_i32 s{20 + tt}, s{20 + tt}, 0")
        a(f"s_lshl_b32 s{20 + tt}, s{20 + tt}, 11")
        a(f"s_add_u32 s{20 + tt}, s{20 + tt}, s10")
        a(f"s_add_u32 s{30 + tt}, s{20 + tt}, {WS_VT:#x}")
        a(f"s_add_u32 s{20 + tt}, s{20 + tt}, {WS_K:#x}")
    for tt in range(9):
        a(f"buffer_load_dwordx4 {ar(tt * 8)}, v5, s[16:19], s{20 + tt} offen")
        a(f"buffer_load_dwordx4 {ar(tt * 8 + 4)}, v5, s[16:19], s{20 + tt} offen offset:1024")
    for tt in range(9):
        a(f"buffer_load_dwordx4 {ar(72 + tt * 8)}, v5, s[16:19], s{30 + tt} offen")
        a(f"buffer_load_dwordx4 {ar(72 + tt * 8 + 4)}, v5, s[16:19], s{30 + tt} offen offset:1024")
    a.stamp(1)
    a("s_sub_i32 s13, 8, s9")
    a("s_max_i32 s13, s13, 0")
    MA, MB, MN = 16, 32, 48
    S = 64
    O = 208
    a("v_mov_b32 v224, 0xff800000")
    a("v_mov_b32 v225, 0")
    a("v_lshlrev_b32 v226, 2, v4")
    for r in range(16):
        kk_c = 8 * (r >> 2) + (r & 3)
        a(f"v_add_u32 v227, {kk_c}, v226")
        a("v_cmp_gt_u32 vcc, v227, v3")
        a("s_nop 1")
        a(f"v_cndmask_b32 v{MA + r}, v224, v225, vcc")
        a(f"v_cndmask_b32 v{MB + r}, v225, v224, vcc")
        a(f"v_mov_b32 v{MN + r}, v224")
    a("s_nop 1")
    for tt in range(9):
        a(f"s_waitcnt vmcnt({18 + 2 * (8 - tt)})")
        s = vr(S + 16 * tt, 16)
        c = vr(MA, 16) if tt == 0 else (vr(MB, 16) if tt == 8 else "0")
        if tt < 8:
            li, lj = a.newlabel("k2_inv"), a.newlabel("k2_join")
            a(f"s_cmp_gt_u32 s13, {tt}")
            a(f"s_cbranch_scc1 {li}")
            a(f"v_mfma_f32_32x32x16_bf16 {s}, {ar(tt * 8)}, {vr(QF)}, {c}")
            a(f"s_branch {lj}")
            a.label(li)
            a(f"v_mfma_f32_32x32x16_bf16 {s}, {ar(tt * 8)}, {vr(QF)}, {vr(MN, 16)}")
            a.label(lj)
        else:
            a(f"v_mfma_f32_32x32x16_bf16 {s}, {ar(tt * 8)}, {vr(QF)}, {c}")
        a(f"v_mfma_f32_32x32x16_bf16 {s}, {ar(tt * 8 + 4)}, {vr(QF + 4)}, {s}")
    a.nop(12)
    a.stamp(2)
    m0, m1 = 224, 225
    a(f"v_max3_f32 v{m0}, v{S}, v{S + 1}, v{S + 2}")
    a(f"v_max3_f32 v{m1}, v{S + 3}, v{S + 4}, v{S + 5}")
    i = 6
    k = 0
    while i < 144:
        m = m0 if k % 2 == 0 else m1
        a(f"v_max3_f32 v{m}, v{m}, v{S + i}, v{S + i + 1}")
        i += 2
        k += 1
    a(f"v_max_f32 v{m0}, v{m0}, v{m1}")
    a(f"v_mov_b32 v{m1}, v{m0}")
    a.nop(2)
    a(f"v_permlane32_swap_b32 v{m0}, v{m1}")
    a.nop(2)
    a(f"v_max_f32 v{m0}, v{m0}, v{m1}")
    cs = (28 ** -0.5) * 1.4426950408889634
    a(f"s_mov_b32 s14, {f32bits(cs):#x}")
    a(f"v_mul_f32 v{m0}, s14, v{m0}")
    a(f"v_sub_f32 v{m0}, 0, v{m0}")
    for i in range(144):
        a(f"v_fma_f32 v{S + i}, v{S + i}, s14, v{m0}")
    for i in range(144):
        a(f"v_exp_f32 v{S + i}, v{S + i}")
    a("s_nop 0")
    for i in range(72):
        a(f"v_cvt_pk_bf16_f32 v{S + i}, v{S + 2 * i}, v{S + 2 * i + 1}")
    a.stamp(3)
    a("s_waitcnt vmcnt(0)")
    a.stamp(4)
    a.nop(2)
    first = True
    for tt in range(9):
        for t in range(2):
            c = "0" if first else vr(O, 16)
            first = False
            a(f"v_mfma_f32_32x32x16_bf16 {vr(O, 16)}, {ar(72 + tt * 8 + 4 * t)}, {vr(S + 8 * tt + 4 * t)}, {c}")
    a.nop(12)
    a(f"v_mov_b32 v224, v{O + 12}")
    a(f"v_mov_b32 v225, v{O + 12}")
    a.nop(2)
    a("v_permlane32_swap_b32 v224, v225")
    a.nop(2)
    a("v_rcp_f32 v225, v225")
    a("s_nop 0")
    for r in range(16):
        a(f"v_mul_f32 v{O + r}, v{O + r}, v225")
    for r in range(8):
        a(f"v_cvt_pk_bf16_f32 v{16 + r}, v{O + 2 * r}, v{O + 2 * r + 1}")
    a("v_lshrrev_b32 v226, 4, v3")
    a("v_lshlrev_b32 v226, 14, v226")
    a("v_and_b32 v227, 15, v3")
    a("v_lshlrev_b32 v227, 4, v227")
    a("v_lshlrev_b32 v228, 3, v4")
    a("v_add3_u32 v226, v226, v227, v228")
    a("s_lshl_b32 s15, s9, 15")
    a("s_lshl_b32 s40, s8, 10")
    a("s_add_u32 s15, s15, s40")
    a(f"s_add_u32 s15, s15, {WS_OP:#x}")
    for i in range(4):
        a(f"buffer_store_dwordx2 {vr(16 + 2 * i, 2)}, v226, s[16:19], s15 offen offset:{i * 256}")
    a.stamp(5)
    a("s_waitcnt vmcnt(0)")
    a.stamp(6)
    a.stamp_flush("s[16:19]", 7, 2)
    a.label(L_end)
    a("s_endpgm")
    return kd(name, 232, 144)


def gen_aug(a):
    a.label("k3_aug")
    a("s_sub_u32 s20, s2, 224")
    a("s_lshl_b32 s20, s20, 2")
    a("s_add_u32 s20, s20, s3")
    a("s_mul_i32 s23, s20, 149797")
    a("s_lshr_b32 s21, s23, 20")
    a("s_mul_i32 s23, s21, 7")
    a("s_sub_u32 s22, s20, s23")
    a(f"s_mul_i32 s24, s21, {WGU_CB}")
    a("s_lshl_b32 s22, s22, 10")
    a("s_add_u32 s24, s24, s22")
    a(f"s_add_u32 s24, s24, {WS_WGU:#x}")
    a("v_and_b32 v6, 31, v2")
    a("v_lshrrev_b32 v7, 5, v2")
    a("v_lshlrev_b32 v7, 4, v7")
    a(f"v_add_u32 v8, {WS_MODB + 4 * 896}, v7")
    a(f"v_add_u32 v9, {WS_MODB + 3 * 896}, v7")
    a("v_mov_b32 v10, 0x7fffffff")
    a("v_cmp_eq_u32 vcc, 0, v6")
    a("s_nop 1")
    a("v_cndmask_b32 v10, v10, v8, vcc")
    a("v_cmp_eq_u32 vcc, 1, v6")
    a("s_nop 1")
    a("v_cndmask_b32 v10, v10, v9, vcc")
    for s_ in range(28):
        a(f"buffer_load_dwordx4 {ar(4 * s_)}, v5, s[16:19], s24 offen")
        a("s_add_u32 s24, s24, 7168")
        a(f"buffer_load_dwordx4 {vr(64 + 4 * s_)}, v10, s[16:19], 0 offen offset:{s_ * 32}")
    for s_ in range(28):
        a(f"s_waitcnt vmcnt({2 * (27 - s_)})")
        c = "0" if s_ == 0 else vr(16, 16)
        a(f"v_mfma_f32_32x32x16_bf16 {vr(16, 16)}, {vr(64 + 4 * s_)}, {ar(4 * s_)}, {c}")
    a("v_cmp_gt_u32 vcc, 32, v2")
    a.nop(14)
    for r in range(2):
        a(f"v_cvt_pk_bf16_f32 v{40 + r}, v{16 + r}, v{16 + r}")
        a(f"v_lshlrev_b32 v{40 + r}, 16, v{40 + r}")
        a(f"v_sub_f32 v{40 + r}, v{16 + r}, v{40 + r}")
        a(f"v_cvt_pk_bf16_f32 v{40 + r}, v{16 + r}, v{40 + r}")
        a(f"v_cndmask_b32 v{40 + r}, 0, v{40 + r}, vcc")
    a("v_mov_b32 v42, 0")
    a("v_mov_b32 v43, 0")
    a("buffer_store_dwordx4 v[40:43], v5, s[16:19], s24 offen")


def gen_gemm_res(a, name, ks_total, ws_a, ws_b, res_from_x, gate_off, out_to_dout, D):
    a.kernel_begin(name)
    L_end = name + "_end"
    NG = ks_total // 2
    NS = D + 1
    a(f"s_cmp_ge_u32 s2, {224 if out_to_dout else 252}")
    a(f"s_cbranch_scc1 {L_end}")
    a.stamp(0)
    a("s_load_dwordx2 s[4:5], s[0:1], 0")
    a("s_load_dwordx2 s[6:7], s[0:1], 88")
    a("s_load_dwordx2 s[44:45], s[0:1], 72")
    a("v_lshrrev_b32 v1, 6, v0")
    a("v_and_b32 v2, 63, v0")
    a("s_nop 0")
    a("v_readfirstlane_b32 s3, v1")
    a("v_and_b32 v3, 15, v2")
    a("v_lshrrev_b32 v4, 4, v2")
    a("v_lshlrev_b32 v5, 4, v2")
    a("s_lshr_b32 s10, s2, 3")
    a("s_mul_i32 s8, s10, 149797")
    a("s_lshr_b32 s9, s8, 20")
    a("s_mul_i32 s8, s9, 7")
    a("s_sub_u32 s8, s10, s8")
    a("s_and_b32 s10, s2, 7")
    a("s_lshl_b32 s10, s10, 2")
    a("s_add_u32 s9, s9, s10")
    a("s_lshl_b32 s20, s9, 2")
    a("s_add_u32 s20, s20, s3")
    a(f"s_mul_i32 s20, s20, {ks_total * 1024}")
    a(f"s_add_u32 s20, s20, {ws_a:#x}")
    a("s_lshl_b32 s23, s3, 11")
    a(f"s_mul_i32 s24, s8, {ks_total * 4096}")
    a("s_add_u32 s24, s24, s23")
    a(f"s_add_u32 s24, s24, {ws_b:#x}")
    a("s_mov_b32 s25, s23")
    a("s_lshl_b32 s26, s9, 6")
    a("s_lshl_b32 s27, s3, 4")
    a("s_add_u32 s26, s26, s27")
    a("v_add_u32 v6, s26, v3")
    a("v_mul_u32_u24 v6, 896, v6")
    a("v_lshlrev_b32 v7, 4, v4")
    a("s_lshl_b32 s28, s8, 7")
    a("v_add3_u32 v6, v6, v7, s28")
    a("s_lshl_b32 s29, s9, 1")
    a("s_lshr_b32 s27, s3, 1")
    a("s_add_u32 s29, s29, s27")
    a("s_mul_i32 s29, s29, 28672")
    a("s_lshl_b32 s27, s8, 12")
    a("s_add_u32 s29, s29, s27")
    a("s_and_b32 s27, s3, 1")
    a("s_lshl_b32 s27, s27, 8")
    a("s_add_u32 s29, s29, s27")
    a(f"s_add_u32 s29, s29, {WS_X2:#x}")
    a("v_lshlrev_b32 v10, 9, v4")
    a("v_lshl_add_u32 v10, v3, 4, v10")
    a("v_lshlrev_b32 v8, 5, v4")
    a("s_lshl_b32 s30, s8, 8")
    a(f"s_add_u32 s30, s30, {WS_MOD + gate_off * 4}")
    a("s_waitcnt lgkmcnt(0)")
    a.srd(12, 4, 2048 * 896)
    a.srd(16, 6, WS_SIZE)
    a.srd(48, 44, 2048 * 896)
    if not out_to_dout:
        a("s_cmp_ge_u32 s2, 224")
        a("s_cbranch_scc1 k3_aug")

    def issue(g):
        base = (g % NS) * 8
        a("s_mov_b32 m0, s25")
        for q in range(2):
            ks = 2 * g + q
            a.t(f"buffer_load_dwordx4 {ar(base + 4 * q)}, v5, s[16:19], s20 offen offset:{(ks % 4) * 1024}", f"{name}g{g}")
        if g % 2 == 1:
            a("s_add_u32 s20, s20, 4096")
        for q in range(2):
            a.t(f"buffer_load_dwordx4 v5, s[16:19], s24 offen offset:{q * 1024} lds", f"{name}g{g}")
        a("s_add_u32 s24, s24, 8192")
        if g % NS == NS - 1:
            a("s_mov_b32 s25, s23")
        else:
            a("s_add_u32 s25, s25, 8192")

    def small_loads():
        if res_from_x:
            a.t(f"buffer_load_dwordx4 {vr(16)}, v6, s[12:15], 0 offen", name + "e")
            a.t(f"buffer_load_dwordx4 {vr(20)}, v6, s[12:15], 0 offen offset:64", name + "e")
        else:
            a.t(f"buffer_load_dwordx4 {vr(16)}, v10, s[16:19], s29 offen", name + "e")
            a.t(f"buffer_load_dwordx4 {vr(20)}, v10, s[16:19], s29 offen offset:2048", name + "e")
        for p_ in range(2):
            a.t(f"buffer_load_dwordx4 {vr(24 + 8 * p_)}, v8, s[16:19], s30 offen offset:{p_ * 128}", name + "e")
            a.t(f"buffer_load_dwordx4 {vr(28 + 8 * p_)}, v8, s[16:19], s30 offen offset:{p_ * 128 + 16}", name + "e")
        if not out_to_dout:
            a(f"s_add_u32 s30, s30, {(1792 - gate_off) * 4}")
            for p_ in range(2):
                a.t(f"buffer_load_dwordx4 {vr(112 + 8 * p_)}, v8, s[16:19], s30 offen offset:{p_ * 128}", name + "e")
                a.t(f"buffer_load_dwordx4 {vr(116 + 8 * p_)}, v8, s[16:19], s30 offen offset:{p_ * 128 + 16}", name + "e")

    ACC = 64
    BF = 80
    for g in range(min(D, NG)):
        issue(g)
    a.stamp(1)
    for g in range(NG):
        a.wait(f"{name}g{g}")
        a("s_barrier")
        if g == 0:
            a.stamp(2)
        for q in range(2):
            for t in range(4):
                a.t(f"ds_read_b128 {vr(BF + 16 * q + 4 * t)}, v5 offset:{(g % NS) * 8192 + q * 4096 + t * 1024}", f"{name}r{g}_{q}_{t}")
        if g + D < NG:
            issue(g + D)
        if g == 1:
            small_loads()
        for q in range(2):
            for t in range(4):
                a.wait(f"{name}r{g}_{q}_{t}")
                acc = vr(ACC + 4 * t)
                c = "0" if (g == 0 and q == 0) else acc
                a(f"v_mfma_f32_16x16x32_bf16 {acc}, {vr(BF + 16 * q + 4 * t)}, {ar((g % NS) * 8 + 4 * q)}, {c}")
        if g == NG - 2:
            a.wait(name + "e")
            for i in range(8):
                a(f"v_lshlrev_b32 v{128 + 2 * i}, 16, v{16 + i}")
                a(f"v_and_b32 v{129 + 2 * i}, 0xffff0000, v{16 + i}")
    a.stamp(3)
    a.nop(8)
    for i in range(8):
        a(f"v_pk_fma_f32 {vr(128 + 2 * i, 2)}, {vr(ACC + 2 * i, 2)}, {vr(24 + 2 * i, 2)}, {vr(128 + 2 * i, 2)}")
    for i in range(8):
        a(f"v_cvt_pk_bf16_f32 v{48 + i}, v{128 + 2 * i}, v{129 + 2 * i}")
    if out_to_dout:
        a(f"buffer_store_dwordx4 {vr(48)}, v6, s[48:51], 0 offen")
        a(f"buffer_store_dwordx4 {vr(52)}, v6, s[48:51], 0 offen offset:64")
    else:
        a(f"buffer_store_dwordx4 {vr(48)}, v10, s[16:19], s29 offen")
        a(f"buffer_store_dwordx4 {vr(52)}, v10, s[16:19], s29 offen offset:2048")
        a(f"s_add_u32 s29, s29, {WS_X2S - WS_X2:#x}")
        for i in range(8):
            a(f"v_lshlrev_b32 v{96 + 2 * i}, 16, v{48 + i}")
            a(f"v_and_b32 v{97 + 2 * i}, 0xffff0000, v{48 + i}")
        for i in range(8):
            a(f"v_pk_mul_f32 {vr(96 + 2 * i, 2)}, {vr(96 + 2 * i, 2)}, {vr(112 + 2 * i, 2)}")
        for i in range(8):
            a(f"v_cvt_pk_bf16_f32 v{56 + i}, v{96 + 2 * i}, v{97 + 2 * i}")
        a(f"buffer_store_dwordx4 {vr(56)}, v10, s[16:19], s29 offen")
        a(f"buffer_store_dwordx4 {vr(60)}, v10, s[16:19], s29 offen offset:2048")
        a("v_mov_b32 v40, 0x3f803f80")
        for r in range(41, 45):
            a(f"v_mov_b32 v{r}, 0")
        a("s_nop 0")
        for i in range(8):
            a(f"v_dot2_f32_bf16 v{41 + (i & 1)}, v{48 + i}, v40, v{41 + (i & 1)}")
            a(f"v_dot2_f32_bf16 v{43 + (i & 1)}, v{48 + i}, v{48 + i}, v{43 + (i & 1)}")
        a.nop(3)
        a("v_add_f32 v46, v41, v42")
        a("v_add_f32 v47, v43, v44")
        for op in ("v_permlane16_swap_b32", "v_permlane32_swap_b32"):
            a("v_mov_b32 v41, v46")
            a("v_mov_b32 v42, v47")
            a.nop(2)
            a(f"{op} v46, v41")
            a(f"{op} v47, v42")
            a.nop(2)
            a("v_add_f32 v46, v46, v41")
            a("v_add_f32 v47, v47, v42")
        a("v_lshlrev_b32 v41, 6, v3")
        a("s_lshl_b32 s27, s26, 6")
        a("s_lshl_b32 s28, s8, 3")
        a("s_add_u32 s27, s27, s28")
        a(f"s_add_u32 s27, s27, {WS_ST:#x}")
        a("buffer_store_dwordx2 v[46:47], v41, s[16:19], s27 offen")
    a.stamp(4)
    if STAMPS:
        a("s_waitcnt vmcnt(0)")
    a.stamp(5)
    a.stamp_flush("s[16:19]", 6, 5 if out_to_dout else 3)
    if not out_to_dout:
        a(f"s_branch {L_end}")
        gen_aug(a)
    a.label(L_end)
    a("s_endpgm")
    return kd(name, 144 if out_to_dout else 176, 8 * NS if out_to_dout else 112)


def gen_k4(a):
    name = "k4_ffn1_kernel"
    a.kernel_begin(name)
    L_end = "k4_end"
    NS = 11
    DEPTH = int(os.environ.get('K4D', '2'))
    a("s_cmp_ge_u32 s2, 256")
    a(f"s_cbranch_scc1 {L_end}")
    a.stamp(0)
    a("s_load_dwordx2 s[6:7], s[0:1], 88")
    a("v_lshrrev_b32 v1, 6, v0")
    a("v_and_b32 v2, 63, v0")
    a("s_nop 0")
    a("v_readfirstlane_b32 s3, v1")
    a("v_and_b32 v3, 31, v2")
    a("v_lshrrev_b32 v4, 5, v2")
    a("v_lshlrev_b32 v5, 4, v2")
    a("s_lshr_b32 s10, s2, 3")
    a("s_and_b32 s8, s10, 3")
    a("s_and_b32 s11, s2, 3")
    a("s_lshl_b32 s11, s11, 2")
    a("s_add_u32 s8, s8, s11")
    a("s_lshr_b32 s9, s10, 2")
    a("s_and_b32 s11, s2, 4")
    a("s_lshl_b32 s11, s11, 1")
    a("s_add_u32 s9, s9, s11")
    a("s_lshl_b32 s9, s9, 2")
    a("s_add_u32 s9, s9, s3")
    a("s_mul_i32 s12, s9, 28672")
    a(f"s_add_u32 s12, s12, {WS_X2S:#x}")
    a(f"s_mul_i32 s22, s8, {WGU_CB}")
    a(f"s_add_u32 s22, s22, {WS_WGU:#x}")
    a("s_mul_i32 s23, s3, 3584")
    a("s_mul_i32 s25, s3, 1792")
    a("s_add_u32 s24, s22, s25")
    a(f"s_add_u32 s24, s24, {28 * 7168}")
    a(f"s_add_u32 s25, s25, {(14 % NS) * 14336}")
    a("s_add_u32 s22, s22, s23")
    a("s_mov_b32 s26, s23")
    a("s_lshl_b32 s15, s9, 11")
    a(f"s_add_u32 s15, s15, {WS_ST:#x}")
    a("v_lshlrev_b32 v6, 6, v3")
    a("v_lshl_add_u32 v6, v4, 5, v6")
    a("v_add_u32 v7, 57344, v5")
    a("v_add_u32 v8, 114688, v5")
    a("s_waitcnt lgkmcnt(0)")
    a.stamp(6)
    a.srd(16, 6, WS_SIZE)
    ST = 16
    a.t(f"buffer_load_dwordx4 {vr(ST)}, v6, s[16:19], s15 offen", "st")
    a.t(f"buffer_load_dwordx4 {vr(ST + 4)}, v6, s[16:19], s15 offen offset:16", "st")

    def load_group(g):
        out = []

        def grp(f):
            old = a.capture()
            f()
            out.append(a.release(old))
        if g < 14:
            for s_ in (2 * g, 2 * g + 1):
                def fa(s_=s_):
                    if s_ % 2 == 1:
                        a("s_mov_b32 m0, s26")
                    a.t(f"buffer_load_dwordx4 {ar(4 * s_)}, v5, s[16:19], s12 offen offset:{(s_ % 4) * 1024}", f"g{g}")
                    if s_ % 4 == 3:
                        a("s_add_u32 s12, s12, 4096")
                grp(fa)
            for q in range(3):
                grp(lambda q=q: a.t(f"buffer_load_dwordx4 v5, s[16:19], s22 offen offset:{q * 1024} lds", f"g{g}"))

            def fl():
                a("s_mov_b32 exec_hi, 0")
                a.t("buffer_load_dwordx4 v5, s[16:19], s22 offen offset:3072 lds", f"g{g}")
                a("s_mov_b32 exec_hi, -1")
                a("s_add_u32 s22, s22, 14336")
                if g % NS == NS - 1:
                    a("s_mov_b32 s26, s23")
                else:
                    a("s_add_u32 s26, s26, 14336")
            grp(fl)
        else:
            def fg():
                a("s_mov_b32 m0, s25")
                a("s_nop 0")
                a.t("buffer_load_dwordx4 v5, s[16:19], s24 offen lds", f"g{g}")
                a("s_mov_b32 exec_hi, 0xffff")
                a.t("buffer_load_dwordx4 v5, s[16:19], s24 offen offset:1024 lds", f"g{g}")
                a("s_mov_b32 exec_hi, -1")
            grp(fg)
        return out

    for g in range(DEPTH):
        for f in load_group(g):
            a.lines.extend(f)
    a.stamp(1)
    BF = 64
    ACC = 128
    AUG = 24
    K1R, K2R, S2 = 28, 30, 32

    def rd(s_, t):
        g = s_ >> 1
        off = (g % NS) * 14336 + (s_ & 1) * 7168 + t * 1024
        base = "v5" if off < 57344 else ("v7" if off < 114688 else "v8")
        off %= 57344
        old = a.capture()
        a.t(f"ds_read_b128 {vr(BF + 28 * (s_ & 1) + 4 * t)}, {base} offset:{off}", f"r{s_}_{t}")
        return a.release(old)

    old = a.capture()
    a("v_cmp_eq_u32 vcc, 1, v4")
    a("s_nop 1")
    a.wait("st")
    a(f"v_cndmask_b32 v{ST + 6}, v{ST + 6}, 0, vcc")
    a(f"v_cndmask_b32 v{ST + 7}, v{ST + 7}, 0, vcc")
    a(f"v_add_f32 v{ST}, v{ST}, v{ST + 2}")
    a(f"v_add_f32 v{ST + 1}, v{ST + 1}, v{ST + 3}")
    a(f"v_add_f32 v{ST + 4}, v{ST + 4}, v{ST + 6}")
    a(f"v_add_f32 v{ST + 5}, v{ST + 5}, v{ST + 7}")
    a(f"v_add_f32 v{ST}, v{ST}, v{ST + 4}")
    a(f"v_add_f32 v{ST + 1}, v{ST + 1}, v{ST + 5}")
    a(f"v_mov_b32 v{ST + 2}, v{ST}")
    a(f"v_mov_b32 v{ST + 3}, v{ST + 1}")
    a("s_nop 1")
    a(f"v_permlane32_swap_b32 v{ST}, v{ST + 2}")
    a(f"v_permlane32_swap_b32 v{ST + 1}, v{ST + 3}")
    a("s_nop 1")
    a(f"v_add_f32 v{ST}, v{ST}, v{ST + 2}")
    a(f"v_add_f32 v{ST + 1}, v{ST + 1}, v{ST + 3}")
    inv = f32bits(1.0 / 448.0)
    mean, var = ST + 2, ST + 3
    a(f"v_mul_f32 v{mean}, {inv:#x}, v{ST}")
    a(f"v_mul_f32 v{var}, {inv:#x}, v{ST + 1}")
    a(f"v_fma_f32 v{var}, -v{mean}, v{mean}, v{var}")
    a(f"v_max_f32 v{var}, 0, v{var}")
    a(f"v_sub_f32 v{mean}, 0, v{mean}")
    a(f"v_cvt_pk_bf16_f32 v{AUG}, v{mean}, v{mean}")
    round_bf16_f32(a, f"v{var}", f"v{var}")
    a(f"v_add_f32 v{var}, {f32bits(1e-5):#x}, v{var}")
    round_bf16_f32(a, f"v{var}", f"v{var}")
    a(f"v_sqrt_f32 v{var}, v{var}")
    a("s_nop 0")
    a(f"v_cvt_pk_bf16_f32 v{AUG + 1}, v{var}, v{var}")
    a(f"v_lshlrev_b32 v{var}, 16, v{AUG + 1}")
    a(f"v_rcp_f32 v{mean}, v{var}")
    a(f"v_mul_f32 v{S2}, v{var}, v{var}")
    a(f"v_cndmask_b32 v{AUG}, v{AUG}, 0, vcc")
    a(f"v_cndmask_b32 v{AUG + 1}, v{AUG + 1}, 0, vcc")
    a(f"v_mov_b32 v{AUG + 2}, 0")
    a(f"v_mov_b32 v{AUG + 3}, 0")
    k1 = -2.0 * 0.7978845608028654 * 1.4426950408889634
    k2 = k1 * 0.044715
    a(f"v_mul_f32 v{K1R}, {f32bits(k1):#x}, v{mean}")
    a(f"v_mul_f32 v{K2R}, v{mean}, v{mean}")
    a(f"v_mul_f32 v{K2R}, v{K2R}, v{mean}")
    a(f"v_mul_f32 v{K2R}, {f32bits(k2):#x}, v{K2R}")
    a(f"v_mov_b32 v{S2 + 1}, v{S2}")
    a(f"v_mov_b32 v{K1R + 1}, v{K1R}")
    a(f"v_mov_b32 v{K2R + 1}, v{K2R}")
    a("v_lshrrev_b32 v9, 4, v3")
    a("v_mul_u32_u24 v9, 57344, v9")
    a("v_lshl_add_u32 v9, v4, 8, v9")
    a("v_and_b32 v10, 15, v3")
    a("v_lshl_add_u32 v9, v10, 4, v9")
    a("s_mul_i32 s30, s9, 114688")
    a("s_mul_i32 s31, s8, 3584")
    a("s_add_u32 s30, s30, s31")
    a(f"s_add_u32 s30, s30, {WS_HH:#x}")
    stat_lines = a.release(old)
    stat_groups = []
    cur = []
    n = 0
    for l in stat_lines:
        cur.append(l)
        if not l.strip().startswith("@"):
            n += 1
            if n == 2:
                stat_groups.append(cur)
                cur = []
                n = 0
    if cur:
        stat_groups.append(cur)

    a.wait("g0")
    a("s_barrier")
    a.stamp(2)
    for t in range(7):
        a.lines.extend(rd(0, t))
    for s_ in range(29):
        extra = []
        if s_ == 0:
            extra = load_group(DEPTH)
        if s_ % 2 == 1:
            g = (s_ + 1) // 2
            a.wait(f"g{g}")
            a("s_barrier")
            if g + DEPTH <= 14:
                extra = load_group(g + DEPTH)
        elif s_ >= 12:
            extra = stat_groups[:7]
            stat_groups = stat_groups[7:]
        for t in range(7):
            a.wait(f"r{s_}_{t}")
            acc = vr(ACC + 16 * t, 16)
            c = "0" if s_ == 0 else acc
            x = ar(4 * s_) if s_ < 28 else vr(AUG)
            a(f"v_mfma_f32_32x32x16_bf16 {acc}, {vr(BF + 28 * (s_ & 1) + 4 * t)}, {x}, {c}")
            if s_ < 28:
                a.lines.extend(rd(s_ + 1, t))
            if t < len(extra):
                a.lines.extend(extra[t])
        for f in extra[7:]:
            a.lines.extend(f)
    assert not stat_groups
    a.stamp(3)
    for t in range(7):
        G = ACC + 16 * t
        U = G + 8
        T = 40
        P = 48
        O = 56 + 4 * (t & 1)
        if t == 6:
            a.nop(4)
        for e in range(0, 8, 2):
            a(f"v_pk_mul_f32 {vr(T + e, 2)}, {vr(G + e, 2)}, {vr(G + e, 2)}")
        for e in range(0, 8, 2):
            a(f"v_pk_fma_f32 {vr(T + e, 2)}, {vr(T + e, 2)}, {vr(K2R, 2)}, {vr(K1R, 2)}")
        for e in range(0, 8, 2):
            a(f"v_pk_mul_f32 {vr(T + e, 2)}, {vr(T + e, 2)}, {vr(G + e, 2)}")
        for e in range(8):
            a(f"v_exp_f32 v{T + e}, v{T + e}")
        for e in range(0, 8, 2):
            a(f"v_pk_mul_f32 {vr(P + e, 2)}, {vr(G + e, 2)}, {vr(U + e, 2)}")
        for e in range(0, 8, 2):
            a(f"v_pk_fma_f32 {vr(T + e, 2)}, {vr(T + e, 2)}, {vr(S2, 2)}, {vr(S2, 2)}")
        for e in range(8):
            a(f"v_rcp_f32 v{T + e}, v{T + e}")
        a("s_nop 0")
        for e in range(0, 8, 2):
            a(f"v_pk_mul_f32 {vr(P + e, 2)}, {vr(P + e, 2)}, {vr(T + e, 2)}")
        for e in range(0, 8, 2):
            a(f"v_cvt_pk_bf16_f32 v{O + e // 2}, v{P + e}, v{P + e + 1}")
        a(f"buffer_store_dwordx4 {vr(O)}, v9, s[16:19], s30 offen offset:{t * 512}")
    a.stamp(4)
    if STAMPS:
        a("s_waitcnt vmcnt(0)")
    a.stamp(5)
    a.stamp_flush("s[16:19]", 7, 4)
    a.label(L_end)
    a("s_endpgm")
    return kd(name, 240, 112)


def main():
    a = Asm()
    K3D = int(os.environ.get("K3D", "3"))
    K5D = int(os.environ.get("K5D", "3"))
    hdr = open("cdna_kernels/" + NAME + ".s.ref").read().split("\n")
    head = [l for l in hdr if l.startswith(";") and "@launch" not in l and "Override" not in l and "grid=ceil" not in l]
    out = "\n".join(head) + "\n"
    out += "; @launch kernel=k0_prep_kernel grid=(256,1,1) block=(512,1,1) lds=61440\n"
    out += "; @launch kernel=k1_qkv_kernel grid=(256,1,1) block=(256,1,1) lds=73728\n"
    out += "; @launch kernel=k2_attn_kernel grid=(256,1,1) block=(256,1,1) lds=0\n"
    out += f"; @launch kernel=k3_wo_kernel grid=(252,1,1) block=(256,1,1) lds=98304\n"
    out += "; @launch kernel=k4_ffn1_kernel grid=(256,1,1) block=(256,1,1) lds=157696\n"
    out += f"; @launch kernel=k5_ffn2_kernel grid=(224,1,1) block=(256,1,1) lds=98304\n"
    out += '.amdgcn_target "amdgcn-amd-amdhsa--gfx950"\n.text\n'
    kds = []
    kds.append(gen_k0(a))
    kds.append(gen_k1(a))
    kds.append(gen_k2(a))
    kds.append(gen_gemm_res(a, "k3_wo_kernel", 16, WS_OP, WS_WO, True, 896, False, K3D))
    kds.append(gen_k4(a))
    kds.append(gen_gemm_res(a, "k5_ffn2_kernel", 56, WS_HH, WS_WD, False, 2240, True, K5D))
    out += a.text()
    out += '.section .rodata,"a"\n'
    out += "".join(kds)
    if STAMPS:
        open(SOUT, "w").write(out)
    else:
        open(OUT, "w").write(out)


if __name__ == "__main__":
    main()
```

```python
import re
src = open('v4.s').read().split('\n')
out = []
names = ['k0_prep_kernel','k1_qkv_kernel','k2_attn_kernel','k3_wo_kernel','k4_ffn1_kernel','k5_ffn2_kernel']
i = 0
pend = None
for ln in src:
    out.append(ln)
    m = re.match(r'^(k\d_\w+_kernel):', ln)
    if m and m.group(1) in names:
        pend = (names.index(m.group(1)), 2)
        continue
    if pend:
        k, c = pend
        c -= 1
        if c == 0:
            out.append(f"""    s_load_dwordx2 s[90:91], s[0:1], 88
    s_getreg_b32 s94, hwreg(HW_REG_XCC_ID, 0, 4)
    s_waitcnt lgkmcnt(0)
    s_mov_b32 s96, s90
    s_and_b32 s97, s91, 0xffff
    s_mov_b32 s98, 0x10000000
    s_mov_b32 s99, 0x00020000
    s_lshl_b32 s95, s2, 2
    s_add_u32 s95, s95, {0x8000000 + k*4096}
    v_mov_b32 v1, s95
    v_mov_b32 v2, s94
    buffer_store_dword v2, v1, s[96:99], 0 offen
    s_waitcnt vmcnt(0)""")
            pend = None
        else:
            pend = (k, c)
txt = '\n'.join(out)
txt = txt.replace("; @launch kernel=k5_ffn2_kernel", "; @launch kernel=k5_ffn2_kernel", 1)
lines = txt.split('\n')
idx = max(i for i, l in enumerate(lines) if l.startswith('; @launch'))
lines.insert(idx + 1, "; @launch kernel=k6_chk_kernel grid=(1,1,1) block=(64,1,1) lds=0")
txt = '\n'.join(lines)
chk = """
.p2align 8
.globl k6_chk_kernel
.type k6_chk_kernel,@function
k6_chk_kernel:
    s_cmp_ge_u32 s2, 1
    s_cbranch_scc1 k6_end
    s_load_dwordx2 s[4:5], s[0:1], 88
    s_load_dwordx2 s[6:7], s[0:1], 80
    s_waitcnt lgkmcnt(0)
    s_mov_b32 s8, s4
    s_and_b32 s9, s5, 0xffff
    s_mov_b32 s10, 0x10000000
    s_mov_b32 s11, 0x00020000
    s_mov_b32 s12, s6
    s_and_b32 s13, s7, 0xffff
    s_mov_b32 s14, 256
    s_mov_b32 s15, 0x00020000
    v_lshlrev_b32 v1, 2, v0
    v_add_u32 v1, 0x8000000, v1
"""
r = 2
regs = {}
for k in range(6):
    for j in range(3):
        chk += f"    buffer_load_dword v{r}, v1, s[8:11], 0 offen offset:{0} \n".replace("offset:0", "") if False else ""
        chk += f"    s_mov_b32 s20, {k*4096 + j*256}\n    buffer_load_dword v{r}, v1, s[8:11], s20 offen\n"
        regs[(k, j)] = r; r += 1
for j in range(3):
    chk += f"    s_mov_b32 s20, {1*4096 + j*256 + 32}\n    buffer_load_dword v{r}, v1, s[8:11], s20 offen\n"
    regs[('s', j)] = r; r += 1
chk += "    s_waitcnt vmcnt(0)\n    s_mov_b32 s30, 0\n    s_mov_b32 s31, 0\n"
def cmpset(a, b, us, bit):
    s = "    s_mov_b64 s[22:23], 0\n"
    for j in range(3):
        s += f"    v_cmp_ne_u32 vcc, v{regs[(a,j)]}, v{regs[(b,j)]}\n    s_nop 1\n    s_or_b64 s[22:23], s[22:23], vcc\n"
    s += f"    s_cmp_lg_u64 s[22:23], 0\n    s_cselect_b32 s24, {us*100}, 0\n    s_add_u32 s30, s30, s24\n    s_cmp_lg_u64 s[22:23], 0\n    s_cselect_b32 s24, {1<<bit}, 0\n    s_or_b32 s31, s31, s24\n"
    return s
chk += cmpset(1, 's', 40, 0)
chk += cmpset(0, 1, 100, 1)
chk += cmpset(3, 4, 200, 2)
chk += cmpset(4, 5, 400, 3)
chk += cmpset(1, 2, 800, 4)
chk += cmpset(2, 3, 1600, 5)
chk += """    v_mov_b32 v40, s31
    v_mov_b32 v41, 0
    buffer_store_dword v40, v41, s[12:15], 0 offen
    s_memrealtime s[32:33]
    s_waitcnt lgkmcnt(0)
k6_loop:
    s_memrealtime s[34:35]
    s_waitcnt lgkmcnt(0)
    s_sub_u32 s36, s34, s32
    s_cmp_lt_u32 s36, s30
    s_cbranch_scc1 k6_loop
k6_end:
    s_endpgm
"""
pos = txt.index('.section .rodata')
txt = txt[:pos] + chk + '\n' + txt[pos:]
txt += """
.p2align 6
.amdhsa_kernel k6_chk_kernel
  .amdhsa_next_free_vgpr 64
  .amdhsa_next_free_sgpr 102
  .amdhsa_accum_offset 64
  .amdhsa_group_segment_fixed_size 0
  .amdhsa_kernarg_size 96
  .amdhsa_user_sgpr_count 2
  .amdhsa_user_sgpr_kernarg_segment_ptr 1
  .amdhsa_system_sgpr_workgroup_id_x 1
.end_amdhsa_kernel
"""
open('xe.s', 'w').write(txt)
```

```python
import struct
import sys
import os

STAMPS = len(sys.argv) > 1 and sys.argv[1] == "stamps"
NAME = "adaLN_cond__sliding_block__glu_gated_geglu__prompt"
OUT = os.environ.get("OUT", "v5.s")
SOUT = os.environ.get("SOUT", "stamps.s")

WS_MOD = 0x0
WS_WQKV = 0x100000
WS_WO = 0x300000
WS_WGU = 0x400000
WS_WD = 0x800000
WS_Q = 0xA00000
WS_K = 0xC00000
WS_VT = 0xE00000
WS_OP = 0x1000000
WS_X2 = 0x1200000
WS_HH = 0x1400000
WS_XH = 0x1C00000
WS_ST = 0x1E00000
WS_X2S = 0x2000000
WS_MODB = 0x8000
WS_SIZE = 0x3000000
WGU_CB = 29 * 7168
PF = int(os.environ.get("PF", "3"))
WQ_HS = 98304

KA_X, KA_WQKV, KA_WO, KA_BX, KA_WG, KA_WU, KA_WD, KA_C, KA_WMOD, KA_OUT, KA_DBG, KA_WS = [8 * i for i in range(12)]


def f32bits(x):
    return struct.unpack("<I", struct.pack("<f", x))[0]


class Asm:
    def __init__(self):
        self.lines = []
        self.uid = 0

    def __call__(self, s):
        self.lines.append("    " + s)

    def label(self, l):
        self.lines.append(l + ":")

    def newlabel(self, p="L"):
        self.uid += 1
        return f"{p}_{self.uid}"

    def raw(self, s):
        self.lines.append(s)

    def nop(self, n):
        while n > 0:
            k = min(n, 16)
            self(f"s_nop {k - 1}")
            n -= k

    def srd(self, d, b, nbytes):
        self(f"s_mov_b32 s{d}, s{b}")
        self(f"s_and_b32 s{d + 1}, s{b + 1}, 0xffff")
        self(f"s_mov_b32 s{d + 2}, {nbytes:#x}")
        self(f"s_mov_b32 s{d + 3}, 0x00020000")

    def stamp(self, i):
        if not STAMPS:
            return
        self(f"s_memtime s[{70 + 2 * i}:{71 + 2 * i}]")
        if i == 0:
            self("s_memrealtime s[94:95]")
        self("s_waitcnt lgkmcnt(0)")

    def stamp_flush(self, srd, n, kidx, wsh=2):
        if not STAMPS:
            return
        if wsh == 3:
            self("s_and_b32 s3, s3, 3")
        self("s_lshl_b32 s68, s2, 2")
        self("s_add_u32 s68, s68, s3")
        self("s_lshl_b32 s68, s68, 6")
        self(f"s_add_u32 s68, s68, {0x1B00000 + kidx * 0x10000:#x}")
        self("v_mov_b32 v1, 0")
        self("s_memrealtime s[96:97]")
        self("s_waitcnt lgkmcnt(0)")
        for i, r in ((14, 94), (15, 96)):
            self(f"v_mov_b32 v2, s{r}")
            self(f"buffer_store_dword v2, v1, {srd}, s68 offen offset:{i * 4}")
            self("s_nop 1")
        for i in range(n):
            self(f"v_mov_b32 v2, s{70 + 2 * i}")
            self(f"buffer_store_dword v2, v1, {srd}, s68 offen offset:{i * 4}")
            self("s_nop 1")

    def kernel_begin(self, name):
        self.raw(f".globl {name}")
        self.raw(".p2align 8")
        self.raw(f".type {name},@function")
        self.label(name)

    def t(self, s, tag):
        self.lines.append("    " + s + " ;@T:" + tag)

    def wait(self, *tags):
        self.lines.append("@WAIT " + " ".join(tags))

    def capture(self):
        old = self.lines
        self.lines = []
        return old

    def release(self, old):
        cap = self.lines
        self.lines = old
        return cap

    def text(self):
        out = []
        vm, ds = [], []
        snaps = {}
        for l in self.lines:
            st = l.strip()
            if st.startswith("@SNAP"):
                snaps[st.split()[1]] = (list(vm), list(ds))
                continue
            if st.startswith("@RESTORE"):
                a_, b_ = snaps[st.split()[1]]
                vm, ds = list(a_), list(b_)
                continue
            if st.startswith("@WAIT"):
                tags = st.split()[1:]
                nv = nd = None
                for tg in tags:
                    iv = max([i for i, x in enumerate(vm) if x == tg], default=None)
                    idd = max([i for i, x in enumerate(ds) if x == tg], default=None)
                    assert iv is not None or idd is not None, tg
                    if iv is not None:
                        n = len(vm) - 1 - iv
                        nv = n if nv is None else min(nv, n)
                    if idd is not None:
                        n = len(ds) - 1 - idd
                        nd = n if nd is None else min(nd, n)
                w = "    s_waitcnt"
                if nv is not None:
                    w += f" vmcnt({min(nv, 63)})"
                if nd is not None:
                    w += f" lgkmcnt({min(nd, 15)})"
                out.append(w)
                continue
            tag = None
            if ";@T:" in l:
                l, tag = l.split(" ;@T:")
            if st.startswith("buffer_") or st.startswith("global_"):
                vm.append(tag)
            elif st.startswith("ds_"):
                ds.append(tag)
            out.append(l)
        return "\n".join(out) + "\n"


def merge(primary, filler, per, key="v_mfma"):
    out = []
    fi = 0
    acc = 0.0
    for l in primary:
        out.append(l)
        if l.strip().startswith(key):
            acc += per
            while acc >= 1.0 and fi < len(filler):
                f = filler[fi]
                fi += 1
                out.append(f)
                if not f.strip().startswith("@"):
                    acc -= 1.0
    out.extend(filler[fi:])
    return out


def merge_any(primary, filler, every):
    out = []
    fi = 0
    n = 0
    for l in primary:
        out.append(l)
        if not l.strip().startswith("@"):
            n += 1
            if n % every == 0 and fi < len(filler):
                out.extend(filler[fi])
                fi += 1
    for f in filler[fi:]:
        out.extend(f)
    return out


def kd(name, vgpr, agpr, sgpr=102):
    acc = (vgpr + 3) // 4 * 4
    nfv = acc + agpr if agpr else vgpr
    return f""".p2align 6
.amdhsa_kernel {name}
  .amdhsa_next_free_vgpr {nfv}
  .amdhsa_next_free_sgpr {sgpr}
  .amdhsa_accum_offset {acc}
  .amdhsa_group_segment_fixed_size 0
  .amdhsa_kernarg_size 96
  .amdhsa_user_sgpr_count 2
  .amdhsa_user_sgpr_kernarg_segment_ptr 1
  .amdhsa_system_sgpr_workgroup_id_x 1
.end_amdhsa_kernel
"""


def vr(b, n=4):
    return f"v[{b}:{b + n - 1}]"


def ar(b, n=4):
    return f"a[{b}:{b + n - 1}]"


def round_bf16_f32(a, dst, src, tmp=None):
    a(f"v_cvt_pk_bf16_f32 {dst}, {src}, {src}")
    a(f"v_lshlrev_b32 {dst}, 16, {dst}")


def gen_k0(a):
    name = "k0_prep_kernel"
    a.kernel_begin(name)
    L_end = "k0_end"
    a("s_cmp_ge_u32 s2, 256")
    a(f"s_cbranch_scc1 {L_end}")
    a.stamp(0)
    a("s_load_dwordx4 s[4:7], s[0:1], 8")
    a("s_load_dwordx4 s[8:11], s[0:1], 32")
    a("s_load_dwordx2 s[12:13], s[0:1], 48")
    a("s_load_dwordx4 s[16:19], s[0:1], 56")
    a("s_load_dwordx2 s[14:15], s[0:1], 88")
    a("s_load_dwordx2 s[34:35], s[0:1], 0")
    a("v_lshrrev_b32 v1, 6, v0")
    a("v_and_b32 v2, 63, v0")
    a("s_nop 0")
    a("v_readfirstlane_b32 s3, v1")
    a("v_and_b32 v3, 15, v2")
    a("v_lshrrev_b32 v4, 4, v2")
    a("v_lshlrev_b32 v7, 4, v2")
    a("s_waitcnt lgkmcnt(0)")
    a.srd(40, 14, WS_SIZE)
    a("s_cmp_lt_u32 s2, 14")
    a("s_cbranch_scc1 k0_mod")
    a("s_cmp_ge_u32 s2, 224")
    a("s_cbranch_scc1 k0_xh")
    a("s_cmp_ge_u32 s2, 217")
    a(f"s_cbranch_scc1 {L_end}")
    STR = 144
    a("s_sub_u32 s20, s2, 14")
    a("s_lshl_b32 s20, s20, 3")
    a("s_add_u32 s20, s20, s3")
    a("v_lshrrev_b32 v5, 3, v2")
    a("v_and_b32 v6, 7, v2")
    a(f"s_mul_i32 s28, s3, {32 * STR}")
    a(f"v_mul_u32_u24 v8, {STR}, v5")
    a("v_lshl_add_u32 v8, v6, 4, v8")
    a("v_add_u32 v8, s28, v8")
    a("v_bfe_u32 v9, v2, 2, 2")
    a("v_lshl_add_u32 v9, v4, 3, v9")
    a(f"v_mul_u32_u24 v9, {STR}, v9")
    a("v_add_u32 v9, s28, v9")
    a("v_and_b32 v11, 3, v2")
    a("v_lshl_add_u32 v12, v11, 4, v9")
    a("v_lshlrev_b32 v6, 4, v6")
    a("v_mov_b32 v18, 0x7fffffff")
    a("s_cmp_lt_u32 s20, 336")
    a("s_cbranch_scc1 k0_pk_qkv")
    a("s_cmp_lt_u32 s20, 448")
    a("s_cbranch_scc1 k0_pk_wo")
    a("s_cmp_lt_u32 s20, 1232")
    a("s_cbranch_scc1 k0_pk_wgu")
    a("s_branch k0_pk_wd")

    def divconst(dst_q, dst_r, src, d, tmp):
        m = (1 << 20) // d + 1
        a(f"s_mul_i32 s{tmp}, s{src}, {m}")
        a(f"s_lshr_b32 s{dst_q}, s{tmp}, 20")
        a(f"s_mul_i32 s{tmp}, s{dst_q}, {d}")
        a(f"s_sub_u32 s{dst_r}, s{src}, s{tmp}")

    def pack_body(rs, dst_offs, qkv=False, alt_last=False, hfs=4):
        for n in range(4):
            vo = 14 if (alt_last and n == 3) else 10
            a(f"buffer_load_dwordx4 {vr(20 + 4 * n)}, v{vo}, s[44:47], s26 offen")
            if n < 3:
                a(f"s_add_u32 s26, s26, {8 * rs}")
        for n in range(4):
            a(f"s_waitcnt vmcnt({3 - n})")
            a(f"ds_write_b128 v8, {vr(20 + 4 * n)} offset:{n * 8 * STR}")
        a("s_waitcnt lgkmcnt(0)")
        for t in range(4):
            for hf in range(2):
                if qkv:
                    av, off = [(13, 0), (15, 0), (13, 56), (16, 0)][t]
                else:
                    av, off = 12, (t >> 1) * 64 + (t & 1) * 8
                a(f"ds_read_b64_tr_b16 {vr(40 + 4 * t + 2 * hf, 2)}, v{av} offset:{off + hf * hfs * STR}")
        a.stamp(1)
        for t in range(4):
            a(f"s_waitcnt lgkmcnt({6 - 2 * t})")
            so, io = dst_offs[t]
            a(f"buffer_store_dwordx4 {vr(40 + 4 * t)}, v7, s[40:43], {so} offen offset:{io}")
        a.stamp(2)
        if STAMPS:
            a("s_waitcnt vmcnt(0)")
        a.stamp(3)
        a.stamp(4)
        a.stamp_flush("s[40:43]", 5, 0, 3)
        a(f"s_branch {L_end}")

    a.label("k0_pk_qkv")
    a.srd(44, 4, 448 * 1344 * 2)
    a.srd(48, 18, 448 * 2688 * 2)
    a.srd(52, 16, 896)
    divconst(21, 22, 20, 24, 23)
    a("s_mul_i32 s24, s3, 56")
    a("v_add_u32 v56, s24, v2")
    a("v_lshlrev_b32 v56, 1, v56")
    a("buffer_load_ushort v57, v56, s[52:55], 0 offen")
    a("s_mul_i32 s25, s24, 5376")
    a("s_lshl_b32 s23, s21, 6")
    a("s_add_u32 s25, s25, s23")
    a("v_mul_u32_u24 v58, 5376, v5")
    a("v_add_u32 v58, v58, v6")
    a("v_bfe_u32 v59, v2, 2, 1")
    a("v_mul_u32_u24 v59, 832, v59")
    a("v_add_u32 v58, v58, v59")
    for n in range(7):
        a(f"buffer_load_dwordx4 {vr(64 + 4 * n)}, v58, s[48:51], s25 offen")
        if n != 6:
            a("s_add_u32 s25, s25, 43008")
    a("s_mul_i32 s24, s22, 112")
    a("s_mul_i32 s26, s21, 86016")
    a("s_add_u32 s26, s26, s24")
    a("v_mul_u32_u24 v10, 2688, v5")
    a("v_add_u32 v10, v10, v6")
    a("v_cmp_eq_u32 vcc, 112, v6")
    a("v_lshl_add_u32 v13, v11, 3, v9")
    a("v_add_u32 v15, 32, v13")
    a("v_cndmask_b32 v10, v10, v18, vcc")
    a("v_add_u32 v16, 88, v13")
    a("v_add_u32 v17, 112, v9")
    a("v_cmp_eq_u32 vcc, 3, v11")
    a("s_and_b32 s24, s22, 7")
    a("s_lshr_b32 s23, s22, 3")
    a("v_cndmask_b32 v15, v15, v17, vcc")
    a("v_cndmask_b32 v16, v16, v17, vcc")
    for n in range(4):
        a(f"buffer_load_dwordx4 {vr(20 + 4 * n)}, v10, s[44:47], s26 offen")
        if n < 3:
            a(f"s_add_u32 s26, s26, {8 * 2688}")
    a(f"s_mul_i32 s30, s24, {2 * WQ_HS}")
    a("s_lshl_b32 s24, s23, 11")
    a("s_add_u32 s30, s30, s24")
    a(f"s_add_u32 s30, s30, {WS_WQKV:#x}")
    a("s_lshr_b32 s24, s21, 2")
    a("s_lshl_b32 s24, s24, 8")
    a("s_and_b32 s25, s21, 3")
    a("s_lshl_b32 s25, s25, 2")
    a("s_add_u32 s24, s24, s25")
    a("s_add_u32 s32, s30, s24")
    a(f"s_add_u32 s32, s32, {14 * 6144}")
    a("s_mul_i32 s24, s21, 6144")
    a("s_add_u32 s30, s30, s24")
    a(f"s_add_u32 s31, s30, {WQ_HS}")
    a("v_lshlrev_b32 v59, 2, v5")
    a("s_waitcnt vmcnt(11)")
    a("v_lshlrev_b32 v57, 16, v57")
    a("v_mul_f32 v60, 0xbfb8aa3b, v57")
    a("v_exp_f32 v60, v60")
    a("s_nop 0")
    a("v_add_f32 v60, 1.0, v60")
    a("v_rcp_f32 v60, v60")
    a("s_nop 0")
    a("v_mul_f32 v60, v57, v60")
    round_bf16_f32(a, "v60", "v60")
    for n in range(7):
        a(f"v_add_u32 v61, {32 * n}, v59")
        a(f"ds_bpermute_b32 v{92 + n}, v61, v60")
    for j in range(8):
        a(f"v_mov_b32 v{100 + j}, 0")
    a("s_waitcnt lgkmcnt(0)")
    for n in range(7):
        a(f"s_waitcnt vmcnt({10 - n})")
        for d in range(4):
            x = 64 + 4 * n + d
            a(f"v_lshlrev_b32 v61, 16, v{x}")
            a(f"v_and_b32 v62, 0xffff0000, v{x}")
            a(f"v_fmac_f32 v{100 + 2 * d}, v{92 + n}, v61")
            a(f"v_fmac_f32 v{101 + 2 * d}, v{92 + n}, v62")
    a("v_and_b32 v61, 1, v4")
    a("v_lshlrev_b32 v61, 1, v61")
    for p_ in range(4):
        a(f"v_permlane32_swap_b32 v{100 + 2 * p_}, v{101 + 2 * p_}")
    a("v_lshrrev_b32 v62, 1, v4")
    a("v_or_b32 v61, v61, v62")
    for p_ in range(4):
        a(f"v_add_f32 v{108 + p_}, v{100 + 2 * p_}, v{101 + 2 * p_}")
    a("v_lshl_add_u32 v61, v61, 2, v6")
    a("v_add_u32 v61, v61, v6")
    a("v_permlane16_swap_b32 v108, v109")
    a("v_permlane16_swap_b32 v110, v111")
    PART, FIN = 36864, 38912
    a("s_lshl_b32 s23, s3, 8")
    a(f"s_add_u32 s24, s23, {PART}")
    a("v_add_f32 v112, v108, v109")
    a("v_add_f32 v113, v110, v111")
    a("v_add_u32 v61, s24, v61")
    a("s_nop 0")
    a("v_add_f32_dpp v112, v112, v112 row_ror:8 row_mask:0xf bank_mask:0xf")
    a("v_add_f32_dpp v113, v113, v113 row_ror:8 row_mask:0xf bank_mask:0xf")
    a("ds_write2_b32 v61, v112, v113 offset0:0 offset1:4")
    for n in range(4):
        a(f"s_waitcnt vmcnt({3 - n})")
        a(f"ds_write_b128 v8, {vr(20 + 4 * n)} offset:{n * 8 * STR}")
    a("s_waitcnt lgkmcnt(0)")
    a("s_barrier")
    a("v_lshlrev_b32 v61, 2, v2")
    for w in range(8):
        a(f"ds_read_b32 v{100 + w}, v61 offset:{PART + w * 256}")
    for t in range(4):
        for hf in range(2):
            av, off = [(13, 0), (15, 0), (13, 56), (16, 0)][t]
            a(f"ds_read_b64_tr_b16 {vr(40 + 4 * t + 2 * hf, 2)}, v{av} offset:{off + hf * 4 * STR}")
    a(f"s_add_u32 s24, s23, {FIN}")
    a("v_add_u32 v61, s24, v61")
    a("v_lshlrev_b32 v62, 5, v4")
    a("v_add_u32 v62, s24, v62")
    a("v_cmp_le_u32 vcc, 32, v2")
    a("s_waitcnt lgkmcnt(8)")
    a("v_add_f32 v100, v100, v101")
    a("v_add_f32 v102, v102, v103")
    a("v_add_f32 v104, v104, v105")
    a("v_add_f32 v106, v106, v107")
    a("v_add_f32 v100, v100, v102")
    a("v_add_f32 v104, v104, v106")
    a("v_add_f32 v100, v100, v104")
    round_bf16_f32(a, "v100", "v100")
    a("v_add_f32 v101, 1.0, v100")
    round_bf16_f32(a, "v101", "v101")
    a("v_cndmask_b32 v100, v100, v101, vcc")
    a("ds_write_b32 v61, v100")
    a("s_waitcnt lgkmcnt(0)")
    SV, CV = 64, 72
    a(f"ds_read_b128 {vr(SV)}, v62")
    a(f"ds_read_b128 {vr(SV + 4)}, v62 offset:16")
    a(f"ds_read_b128 {vr(CV)}, v62 offset:128")
    a(f"ds_read_b128 {vr(CV + 4)}, v62 offset:144")
    a("v_and_b32 v61, 1, v4")
    a(f"v_mul_u32_u24 v61, {WQ_HS}, v61")
    a("v_lshrrev_b32 v63, 1, v4")
    a("v_lshl_add_u32 v61, v63, 10, v61")
    a("v_lshl_add_u32 v61, v3, 4, v61")
    a("v_and_b32 v63, 0x2f, v2")
    a("v_cmp_eq_u32 vcc, 0x2c, v63")
    for t in range(4):
        a(f"v_mov_b32 v{96 + t}, 0")
    a("s_waitcnt lgkmcnt(0)")
    for t in range(4):
        for d in range(4):
            x = 40 + 4 * t + d
            a(f"v_lshlrev_b32 v{80 + 2 * d}, 16, v{x}")
            a(f"v_and_b32 v{81 + 2 * d}, 0xffff0000, v{x}")
        for e in range(8):
            a(f"v_fmac_f32 v{96 + t}, v{80 + e}, v{SV + e}")
        for e in range(8):
            a(f"v_mul_f32 v{80 + e}, v{80 + e}, v{CV + e}")
        for d in range(4):
            a(f"v_cvt_pk_bf16_f32 v{40 + 4 * t + d}, v{80 + 2 * d}, v{81 + 2 * d}")
        a(f"buffer_store_dwordx4 {vr(40 + 4 * t)}, v7, s[40:43], s{30 + (t >> 1)} offen offset:{(t & 1) * 1024}")
    a("v_permlane32_swap_b32 v96, v97")
    a("v_permlane32_swap_b32 v98, v99")
    a.nop(2)
    a("v_add_f32 v96, v96, v97")
    a("v_add_f32 v98, v98, v99")
    a.nop(2)
    a("v_permlane16_swap_b32 v96, v98")
    a.nop(2)
    a("v_add_f32 v96, v96, v98")
    a("v_cvt_pk_bf16_f32 v97, v96, v96")
    a("v_lshlrev_b32 v97, 16, v97")
    a("v_sub_f32 v97, v96, v97")
    a("v_cvt_pk_bf16_f32 v96, v96, v97")
    a("s_sub_u32 s24, s20, 16")
    a("s_cmp_lt_u32 s24, 8")
    a("s_cselect_b64 s[24:25], vcc, 0")
    a("v_mov_b32 v97, 0x3f80")
    a("v_mov_b32 v98, 0")
    a("v_mov_b32 v99, 0")
    a("v_cndmask_b32 v96, v96, v97, s[24:25]")
    a("buffer_store_dword v96, v61, s[40:43], s32 offen")
    a("s_cmp_lg_u32 s21, 13")
    a("s_cbranch_scc1 k0_qkv_fin")
    a("buffer_store_dwordx2 v[98:99], v61, s[40:43], s32 offen offset:4")
    a.label("k0_qkv_fin")
    a.stamp(1)
    a.stamp(2)
    if STAMPS:
        a("s_waitcnt vmcnt(0)")
    a.stamp(3)
    a.stamp(4)
    a.stamp_flush("s[40:43]", 5, 0, 3)
    a(f"s_branch {L_end}")

    a.label("k0_pk_wo")
    a.srd(44, 6, 448 * 448 * 2)
    a("s_sub_u32 s20, s20, 336")
    divconst(21, 22, 20, 7, 23)
    a("s_mul_i32 s26, s21, 25088")
    a("s_lshl_b32 s24, s22, 7")
    a("s_add_u32 s26, s26, s24")
    a("v_mul_u32_u24 v10, 896, v5")
    a("v_add_u32 v10, v10, v6")
    a("v_cmp_le_u32 vcc, 4, v5")
    a("s_lshl_b32 s30, s22, 4")
    a("s_add_u32 s30, s30, s21")
    a("v_cndmask_b32 v14, v10, v18, vcc")
    a("s_lshl_b32 s30, s30, 12")
    a(f"s_add_u32 s30, s30, {WS_WO:#x}")
    a(f"v_mul_u32_u24 v13, {4 * STR}, v4")
    a("v_sub_u32 v12, v12, v13")
    pack_body(896, [("s30", t * 1024) for t in range(4)], alt_last=True, hfs=16)

    a.label("k0_pk_wgu")
    a.srd(44, 8, 448 * 1792 * 2)
    a.srd(48, 10, 448 * 1792 * 2)
    a("s_sub_u32 s20, s20, 448")
    divconst(21, 22, 20, 28, 23)
    a("s_mul_i32 s26, s21, 57344")
    a("s_lshl_b32 s24, s22, 7")
    a("s_add_u32 s26, s26, s24")
    a("s_add_u32 s27, s26, 28672")
    a("v_mul_u32_u24 v10, 3584, v5")
    a("v_add_u32 v10, v10, v6")
    a(f"buffer_load_dwordx4 {vr(20)}, v10, s[44:47], s26 offen")
    a(f"buffer_load_dwordx4 {vr(24)}, v10, s[44:47], s27 offen")
    a(f"buffer_load_dwordx4 {vr(28)}, v10, s[48:51], s26 offen")
    a(f"buffer_load_dwordx4 {vr(32)}, v10, s[48:51], s27 offen")
    a("v_and_b32 v13, 1, v4")
    a("v_lshrrev_b32 v14, 1, v4")
    a("v_lshlrev_b32 v13, 4, v13")
    a("v_lshl_add_u32 v13, v14, 3, v13")
    a("v_bfe_u32 v14, v2, 2, 2")
    a("v_add_u32 v13, v13, v14")
    a(f"v_mul_u32_u24 v13, {STR}, v13")
    a("v_and_b32 v14, 1, v11")
    a("v_lshl_add_u32 v13, v14, 4, v13")
    a("v_lshrrev_b32 v14, 1, v11")
    a("v_lshl_add_u32 v13, v14, 3, v13")
    a("v_add_u32 v13, s28, v13")
    a("s_mul_i32 s25, s21, 7168")
    a(f"s_add_u32 s25, s25, {WS_WGU:#x}")
    a("s_lshl_b32 s24, s22, 2")
    for t in range(4):
        a(f"s_add_u32 s20, s24, {t}")
        divconst(21, 22, 20, 7, 23)
        a(f"s_mul_i32 s{30 + t}, s21, {WGU_CB}")
        a("s_lshl_b32 s22, s22, 10")
        a(f"s_add_u32 s{30 + t}, s{30 + t}, s22")
        a(f"s_add_u32 s{30 + t}, s{30 + t}, s25")
    for n in range(4):
        a(f"s_waitcnt vmcnt({3 - n})")
        a(f"ds_write_b128 v8, {vr(20 + 4 * n)} offset:{n * 8 * STR}")
    a("s_waitcnt lgkmcnt(0)")
    for t in range(4):
        for hf in range(2):
            a(f"ds_read_b64_tr_b16 {vr(40 + 4 * t + 2 * hf, 2)}, v13 offset:{t * 32 + hf * 4 * STR}")
    for t in range(4):
        a(f"s_waitcnt lgkmcnt({6 - 2 * t})")
        a(f"buffer_store_dwordx4 {vr(40 + 4 * t)}, v7, s[40:43], s{30 + t} offen")
    a.stamp(1)
    a.stamp(2)
    if STAMPS:
        a("s_waitcnt vmcnt(0)")
    a.stamp(3)
    a.stamp(4)
    a.stamp_flush("s[40:43]", 5, 0, 3)
    a(f"s_branch {L_end}")

    a.label("k0_pk_wd")
    a.srd(44, 12, 1792 * 448 * 2)
    a("s_sub_u32 s20, s20, 1232")
    divconst(21, 22, 20, 7, 23)
    a("s_mul_i32 s26, s21, 28672")
    a("s_lshl_b32 s24, s22, 7")
    a("s_add_u32 s26, s26, s24")
    a("v_mul_u32_u24 v10, 896, v5")
    a("v_add_u32 v10, v10, v6")
    a("s_mul_i32 s30, s22, 56")
    a("s_add_u32 s30, s30, s21")
    a("s_lshl_b32 s30, s30, 12")
    a(f"s_add_u32 s30, s30, {WS_WD:#x}")
    pack_body(896, [("s30", t * 1024) for t in range(4)])

    a.label("k0_xh")
    a("s_cmp_ge_u32 s3, 4")
    a(f"s_cbranch_scc1 {L_end}")
    a.srd(44, 34, 2048 * 896)
    a("s_sub_u32 s20, s2, 224")
    a("s_lshr_b32 s20, s20, 3")
    a("s_lshl_b32 s20, s20, 2")
    a("s_add_u32 s20, s20, s3")
    a("s_and_b32 s21, s2, 7")
    a("s_lshl_b32 s21, s21, 4")
    a("s_add_u32 s20, s20, s21")
    a("s_mul_i32 s26, s20, 14336")
    a(f"s_add_u32 s30, s26, {WS_XH:#x}")
    VX = 64
    for n in range(14):
        a(f"buffer_load_dwordx4 {vr(VX + 4 * n)}, v7, s[44:47], s26 offen offset:{(n % 4) * 1024}")
        if n % 4 == 3:
            a("s_add_u32 s26, s26, 4096")
    a("s_mul_i32 s28, s3, 14848")
    for n in range(14):
        a(f"v_add_u32 v{20 + n}, {64 * n}, v2")
        a(f"v_mul_u32_u24 v34, 1171, v{20 + n}")
        a("v_lshrrev_b32 v34, 16, v34")
        a(f"v_lshlrev_b32 v{20 + n}, 4, v{20 + n}")
        a(f"v_lshl_add_u32 v{20 + n}, v34, 5, v{20 + n}")
        a(f"v_add_u32 v{20 + n}, s28, v{20 + n}")
    a("v_mul_u32_u24 v9, 928, v3")
    a("v_lshl_add_u32 v9, v4, 4, v9")
    a("v_add_u32 v9, s28, v9")
    for n in range(14):
        a(f"s_waitcnt vmcnt({13 - n})")
        a(f"ds_write_b128 v{20 + n}, {vr(VX + 4 * n)}")
    a("s_waitcnt lgkmcnt(0)")
    for ks in range(14):
        a(f"ds_read_b128 {vr(VX + 4 * ks)}, v9 offset:{ks * 64}")
    t = 16
    s0, s1, q0, q1, ones = t, t + 1, t + 2, t + 3, t + 4
    a(f"v_mov_b32 v{ones}, 0x3f803f80")
    for r in (s0, s1, q0, q1):
        a(f"v_mov_b32 v{r}, 0")
    for i in range(56):
        if i % 4 == 0:
            a(f"s_waitcnt lgkmcnt({13 - i // 4})")
        x = VX + i
        sx = s0 if (i & 1) == 0 else s1
        qx = q0 if (i & 1) == 0 else q1
        a(f"v_dot2_f32_bf16 v{sx}, v{x}, v{ones}, v{sx}")
        a(f"v_dot2_f32_bf16 v{qx}, v{x}, v{x}, v{qx}")
    a.nop(3)
    a(f"v_add_f32 v{s0}, v{s0}, v{s1}")
    a(f"v_add_f32 v{q0}, v{q0}, v{q1}")
    ln_finalize(a, s0, q0, s1, q1, 24)
    for ks in range(14):
        yv = 32 + 8 * (ks & 1)
        ov = 48 + 4 * (ks & 3)
        for d in range(4):
            x = VX + 4 * ks + d
            a(f"v_lshlrev_b32 v{yv + 2 * d}, 16, v{x}")
            a(f"v_and_b32 v{yv + 2 * d + 1}, 0xffff0000, v{x}")
        for d in range(4):
            a(f"v_pk_fma_f32 {vr(yv + 2 * d, 2)}, {vr(yv + 2 * d, 2)}, v[24:25], v[26:27]")
        for d in range(4):
            a(f"v_cvt_pk_bf16_f32 v{ov + d}, v{yv + 2 * d}, v{yv + 2 * d + 1}")
        a(f"buffer_store_dwordx4 {vr(ov)}, v7, s[40:43], s30 offen offset:{(ks % 4) * 1024}")
        if ks % 4 == 3:
            a("s_add_u32 s30, s30, 4096")
    a.stamp(1)
    a.stamp(2)
    if STAMPS:
        a("s_waitcnt vmcnt(0)")
    a.stamp(3)
    a.stamp(4)
    a.stamp_flush("s[40:43]", 5, 0, 3)
    a(f"s_branch {L_end}")

    a.label("k0_mod")
    a.srd(44, 16, 896)
    a.srd(48, 18, 448 * 2688 * 2)
    a("s_mul_i32 s20, s3, 56")
    a("v_add_u32 v5, s20, v2")
    a("v_lshlrev_b32 v5, 1, v5")
    a("buffer_load_ushort v6, v5, s[44:47], 0 offen")
    a("s_mul_i32 s21, s20, 5376")
    a("s_lshl_b32 s22, s2, 8")
    a("s_add_u32 s22, s22, 1792")
    a("s_add_u32 s21, s21, s22")
    a("v_mul_u32_u24 v8, 5376, v4")
    a("v_lshl_add_u32 v8, v3, 4, v8")
    for n in range(14):
        a(f"buffer_load_dwordx4 {vr(64 + 4 * n)}, v8, s[48:51], s21 offen")
        if n != 13:
            a("s_add_u32 s21, s21, 21504")
    a("v_lshlrev_b32 v9, 2, v4")
    a.stamp(1)
    a("s_waitcnt vmcnt(14)")
    a("v_lshlrev_b32 v6, 16, v6")
    a("v_mul_f32 v10, 0xbfb8aa3b, v6")
    a("v_exp_f32 v10, v10")
    a("s_nop 0")
    a("v_add_f32 v10, 1.0, v10")
    a("v_rcp_f32 v10, v10")
    a("s_nop 0")
    a("v_mul_f32 v10, v6, v10")
    round_bf16_f32(a, "v10", "v10")
    for n in range(14):
        a(f"v_add_u32 v11, {16 * n}, v9")
        a(f"ds_bpermute_b32 v{20 + n}, v11, v10")
    for j in range(8):
        a(f"v_mov_b32 v{40 + j}, 0")
    a("s_waitcnt lgkmcnt(0)")
    for n in range(14):
        a(f"s_waitcnt vmcnt({13 - n})")
        for d in range(4):
            x = 64 + 4 * n + d
            a(f"v_lshlrev_b32 v12, 16, v{x}")
            a(f"v_and_b32 v13, 0xffff0000, v{x}")
            a(f"v_fmac_f32 v{40 + 2 * d}, v{20 + n}, v12")
            a(f"v_fmac_f32 v{41 + 2 * d}, v{20 + n}, v13")
    a.stamp(2)
    a.nop(2)
    for p_ in range(4):
        a(f"v_permlane32_swap_b32 v{40 + 2 * p_}, v{41 + 2 * p_}")
    a.nop(2)
    for p_ in range(4):
        a(f"v_add_f32 v{50 + p_}, v{40 + 2 * p_}, v{41 + 2 * p_}")
    a.nop(2)
    a("v_permlane16_swap_b32 v50, v51")
    a("v_permlane16_swap_b32 v52, v53")
    a.nop(2)
    a("v_add_f32 v54, v50, v51")
    a("v_add_f32 v55, v52, v53")
    a("v_and_b32 v12, 1, v4")
    a("v_lshlrev_b32 v12, 1, v12")
    a("v_lshrrev_b32 v13, 1, v4")
    a("v_or_b32 v12, v12, v13")
    a("v_lshl_add_u32 v12, v3, 3, v12")
    a("v_lshlrev_b32 v12, 2, v12")
    a("s_lshl_b32 s23, s3, 9")
    a("v_add_u32 v12, s23, v12")
    a("ds_write2_b32 v12, v54, v55 offset0:0 offset1:4")
    a("s_waitcnt lgkmcnt(0)")
    a.stamp(3)
    a("s_barrier")
    a("s_cmp_ge_u32 s3, 2")
    a(f"s_cbranch_scc1 {L_end}")
    a("v_lshlrev_b32 v16, 2, v0")
    for w in range(8):
        a(f"ds_read_b32 v{20 + w}, v16 offset:{w * 512}")
    a("s_waitcnt lgkmcnt(0)")
    a("v_add_f32 v20, v20, v21")
    a("v_add_f32 v22, v22, v23")
    a("v_add_f32 v24, v24, v25")
    a("v_add_f32 v26, v26, v27")
    a("v_add_f32 v20, v20, v22")
    a("v_add_f32 v24, v24, v26")
    a("v_add_f32 v20, v20, v24")
    round_bf16_f32(a, "v20", "v20")
    a("v_add_f32 v21, 1.0, v20")
    round_bf16_f32(a, "v21", "v21")
    a("s_lshl_b32 s24, s2, 7")
    a("s_add_u32 s24, s24, 896")
    a("v_add_u32 v22, s24, v0")
    a("v_subrev_u32 v23, 448, v22")
    a("v_subrev_u32 v24, 1792, v22")
    a("v_min_u32 v23, v23, v24")
    a("v_cmp_gt_u32 vcc, 448, v23")
    a("s_nop 1")
    a("v_cndmask_b32 v20, v20, v21, vcc")
    a("v_lshlrev_b32 v23, 1, v22")
    a("v_lshlrev_b32 v22, 2, v22")
    a("buffer_store_dword v20, v22, s[40:43], 0 offen")
    a(f"s_mov_b32 s24, {WS_MODB:#x}")
    a("v_lshrrev_b32 v21, 16, v20")
    a("buffer_store_short v21, v23, s[40:43], s24 offen")
    if STAMPS:
        a("s_waitcnt vmcnt(0)")
    a.stamp(4)
    a.stamp_flush("s[40:43]", 5, 0, 3)
    a.label(L_end)
    a("s_endpgm")
    return kd(name, 120, 0)


def ln_finalize(a, s0, q0, s1, q1, rs):
    for op in ("v_permlane16_swap_b32", "v_permlane32_swap_b32"):
        a(f"v_mov_b32 v{s1}, v{s0}")
        a(f"v_mov_b32 v{q1}, v{q0}")
        a.nop(2)
        a(f"{op} v{s0}, v{s1}")
        a(f"{op} v{q0}, v{q1}")
        a.nop(2)
        a(f"v_add_f32 v{s0}, v{s0}, v{s1}")
        a(f"v_add_f32 v{q0}, v{q0}, v{q1}")
    inv = f32bits(1.0 / 448.0)
    mean, var = s1, q1
    a(f"v_mul_f32 v{mean}, {inv:#x}, v{s0}")
    a(f"v_mul_f32 v{var}, {inv:#x}, v{q0}")
    a(f"v_fma_f32 v{var}, -v{mean}, v{mean}, v{var}")
    a(f"v_max_f32 v{var}, 0, v{var}")
    round_bf16_f32(a, f"v{mean}", f"v{mean}")
    round_bf16_f32(a, f"v{var}", f"v{var}")
    a(f"v_add_f32 v{var}, {f32bits(1e-5):#x}, v{var}")
    round_bf16_f32(a, f"v{var}", f"v{var}")
    a(f"v_sqrt_f32 v{var}, v{var}")
    a("s_nop 0")
    round_bf16_f32(a, f"v{var}", f"v{var}")
    a(f"v_rcp_f32 v{rs}, v{var}")
    a("s_nop 0")
    a(f"v_mov_b32 v{rs + 1}, v{rs}")
    a(f"v_mul_f32 v{rs + 2}, v{mean}, v{rs}")
    a(f"v_sub_f32 v{rs + 2}, 0, v{rs + 2}")
    a(f"v_mov_b32 v{rs + 3}, v{rs + 2}")


def ln_norm(a, vx, rs, v_rd_mod, lds_vaddr, lds_off, packed, xtag, uid):
    def rd(ks):
        b = 16 + 16 * (ks & 1)
        a.t(f"ds_read_b128 {vr(b)}, {v_rd_mod} offset:{ks * 128}", f"{uid}m{ks}")
        a.t(f"ds_read_b128 {vr(b + 4)}, {v_rd_mod} offset:{ks * 128 + 16}", f"{uid}m{ks}")
        a.t(f"ds_read_b128 {vr(b + 8)}, {v_rd_mod} offset:{1792 + ks * 128}", f"{uid}m{ks}")
        a.t(f"ds_read_b128 {vr(b + 12)}, {v_rd_mod} offset:{1792 + ks * 128 + 16}", f"{uid}m{ks}")
    rd(0)
    yv = 48
    for ks in range(14):
        sv = 16 + 16 * (ks & 1)
        cv = sv + 8
        ov = 56 + 4 * (ks & 1)
        if ks < 13:
            rd(ks + 1)
        if xtag is not None:
            a.wait(f"{xtag}{ks}")
        for d in range(4):
            x = vx + 4 * ks + d
            a(f"v_lshlrev_b32 v{yv + 2 * d}, 16, v{x}")
            a(f"v_and_b32 v{yv + 2 * d + 1}, 0xffff0000, v{x}")
        if rs is not None:
            if packed:
                for d in range(4):
                    a(f"v_pk_fma_f32 {vr(yv + 2 * d, 2)}, {vr(yv + 2 * d, 2)}, {vr(rs, 2)}, {vr(rs + 2, 2)}")
            else:
                for d in range(8):
                    a(f"v_fma_f32 v{yv + d}, v{yv + d}, v{rs}, v{rs + 2}")
        a.wait(f"{uid}m{ks}")
        if packed:
            for d in range(4):
                a(f"v_pk_fma_f32 {vr(yv + 2 * d, 2)}, {vr(yv + 2 * d, 2)}, {vr(cv + 2 * d, 2)}, {vr(sv + 2 * d, 2)}")
        else:
            for d in range(8):
                a(f"v_fma_f32 v{yv + d}, v{yv + d}, v{cv + d}, v{sv + d}")
        for d in range(4):
            a(f"v_cvt_pk_bf16_f32 v{ov + d}, v{yv + 2 * d}, v{yv + 2 * d + 1}")
        a.t(f"ds_write_b128 {lds_vaddr}, {vr(ov)} offset:{lds_off + ks * 1024}", f"{uid}w")


def gen_k12(a):
    name = "k1_attn_kernel"
    a.kernel_begin(name)
    L_end = "k1_end"
    D = int(os.environ.get("K1D", "3"))
    NSL = D + 1
    KIMG, VIMG = 98304, 98304 + 24576
    a("s_cmp_ge_u32 s2, 256")
    a(f"s_cbranch_scc1 {L_end}")
    a.stamp(0)
    a("s_load_dwordx2 s[6:7], s[0:1], 88")
    a("v_lshrrev_b32 v1, 6, v0")
    a("v_and_b32 v2, 63, v0")
    a("s_nop 0")
    a("v_readfirstlane_b32 s3, v1")
    a("v_and_b32 v3, 15, v2")
    a("v_lshrrev_b32 v4, 4, v2")
    a("v_lshlrev_b32 v5, 4, v2")
    a("s_lshr_b32 s10, s2, 3")
    a("s_and_b32 s8, s10, 3")
    a("s_and_b32 s11, s2, 3")
    a("s_lshl_b32 s11, s11, 2")
    a("s_add_u32 s8, s8, s11")
    a("s_lshr_b32 s9, s10, 2")
    a("s_and_b32 s11, s2, 4")
    a("s_lshl_b32 s11, s11, 1")
    a("s_add_u32 s9, s9, s11")
    a("s_lshl_b32 s10, s9, 3")
    a("s_add_u32 s10, s10, s3")
    for j in range(3):
        a(f"s_sub_i32 s{20 + j}, s10, {16 - 8 * j}")
        a(f"s_max_i32 s{20 + j}, s{20 + j}, 0")
        a(f"s_mul_i32 s{20 + j}, s{20 + j}, 14336")
        a(f"s_add_u32 s{20 + j}, s{20 + j}, {WS_XH:#x}")
    a("s_lshl_b32 s25, s3, 10")
    a(f"s_mul_i32 s24, s8, {WQ_HS}")
    a("s_add_u32 s24, s24, s25")
    a(f"s_add_u32 s24, s24, {WS_WQKV:#x}")
    a("s_mov_b32 m0, s25")
    a("v_add_u32 v6, 49152, v5")
    a("s_waitcnt lgkmcnt(0)")
    a.srd(16, 6, WS_SIZE)

    def bpiece(n):
        old = a.capture()
        a.t("buffer_load_dwordx4 v5, s[16:19], s24 offen lds", f"B{n}")
        if n < 11:
            a("s_add_u32 s25, s25, 8192")
            a("s_mov_b32 m0, s25")
            a("s_add_u32 s24, s24, 8192")
        return a.release(old)

    def aload(ks, j):
        old = a.capture()
        a.t(f"buffer_load_dwordx4 {ar((ks % NSL) * 12 + 4 * j)}, v5, s[16:19], s{20 + j} offen offset:{(ks % 4) * 1024}", f"A{ks}_{j}")
        if ks % 4 == 3:
            a(f"s_add_u32 s{20 + j}, s{20 + j}, 4096")
        return a.release(old)

    BFB = 12 * NSL
    order = [2, 3, 4, 5, 0, 1]

    def rd(ks, t):
        off = ks * 6144 + t * 1024
        base = "v5" if off < 49152 else "v6"
        off %= 49152
        old = a.capture()
        a.t(f"ds_read_b128 {ar(BFB + 24 * (ks & 1) + 4 * t)}, {base} offset:{off}", f"r{ks}_{t}")
        return a.release(old)

    ACC, S, Q, O, T = 16, 72, 140, 144, 152

    def acc(j, t):
        return ACC + (16 * j + 4 * (t - 2) if t >= 2 else 48 + 4 * t)

    a.lines.extend(bpiece(0))
    for j in range(3):
        a.lines.extend(aload(0, j))
    a.lines.extend(bpiece(1))
    a.lines.extend(bpiece(2))
    for ks in range(1, D):
        for j in range(3):
            a.lines.extend(aload(ks, j))
    a.stamp(1)
    old = a.capture()
    a("v_mov_b32 v8, 0xff800000")
    a("v_lshlrev_b32 v9, 2, v4")
    a("s_sub_i32 s26, 16, s10")
    a("s_cmp_gt_i32 s26, 0")
    a("s_cselect_b32 s27, 0xff800000, 0")
    for r in range(4):
        a(f"v_add_u32 v10, {r}, v9")
        a("v_cmp_gt_u32 vcc, v10, v3")
        a(f"v_mov_b32 v{T + r}, 0x3f803f80")
        a("s_nop 0")
        a(f"v_cndmask_b32 v{S + r}, v8, 0, vcc")
        a(f"v_cndmask_b32 v{S + 64 + r}, 0, v8, vcc")
        a(f"v_min_f32 v{S + r}, s27, v{S + r}")
    for u in range(1, 16):
        a(f"s_cmp_gt_i32 s26, {u}")
        a("s_cselect_b32 s27, 0xff800000, 0")
        for r in range(4):
            a(f"v_mov_b32 v{S + 4 * u + r}, s27")
    a("v_cmp_eq_u32 vcc, 3, v4")
    a("s_lshl_b32 s28, s3, 10")
    a(f"s_add_u32 s28, s28, {KIMG}")
    a(f"v_cndmask_b32 v{T + 2}, v{T + 2}, 0, vcc")
    a(f"v_cndmask_b32 v{T + 3}, v{T + 3}, 0, vcc")
    a("v_add_u32 v10, s28, v5")
    a("s_lshr_b32 s28, s3, 1")
    a("s_lshl_b32 s28, s28, 11")
    a(f"s_add_u32 s28, s28, {VIMG}")
    a("v_add_u32 v11, s28, v5")
    a("s_and_b32 s29, s3, 1")
    a("s_lshl_b32 s28, s29, 3")
    a("v_add_u32 v12, s28, v11")
    a("s_lshl_b32 s30, s10, 14")
    a("s_lshl_b32 s28, s8, 10")
    a("s_add_u32 s30, s30, s28")
    a(f"s_add_u32 s30, s30, {WS_OP:#x}")
    a("s_lshr_b32 s31, s2, 3")
    a("s_lshl_b32 s31, s31, 3")
    a("s_add_u32 s31, s31, s3")
    a("s_min_u32 s32, s31, 195")
    a("s_mul_i32 s33, s32, 21400")
    a("s_lshr_b32 s33, s33, 20")
    a("s_mul_i32 s33, s33, 7168")
    a("s_lshl_b32 s32, s32, 12")
    a("s_add_u32 s32, s32, s33")
    a("s_and_b32 s33, s2, 3")
    a(f"s_mul_i32 s33, s33, {4 * WGU_CB}")
    a("s_add_u32 s32, s32, s33")
    a(f"s_add_u32 s32, s32, {WS_WGU:#x}")
    a("s_and_b32 s31, s31, 127")
    a("s_min_u32 s31, s31, 111")
    a("s_lshl_b32 s31, s31, 12")
    a(f"s_add_u32 s31, s31, {WS_WO:#x}")
    a("v_lshlrev_b32 v13, 6, v2")
    fill = []
    for l in a.release(old):
        if fill and fill[-1][-1].strip().startswith("s_cmp"):
            fill[-1].append(l)
        else:
            fill.append([l])

    a.wait("B0")
    a("s_barrier")
    a.stamp(2)
    for t in order:
        a.lines.extend(rd(0, t))
    bsched = {0: [3, 4], 1: [5], 3: [6], 4: [7], 5: [8], 7: [9], 8: [10], 9: [11]}
    bars = {0: 2, 3: 5, 7: 8, 11: 11}
    for ks in range(15):
        extra = []
        for n in bsched.get(ks, []):
            extra.append(bpiece(n))
        if ks + D < 14:
            for j in range(3):
                extra.append(aload(ks + D, j))
        if ks in bars:
            a.wait(f"B{bars[ks]}")
            a("s_barrier")
        reads = [rd(ks + 1, t) for t in order] if ks < 14 else []
        mf = [(t, j) for t in (2, 3, 4, 5) for j in range(3)] + [(0, 2), (1, 2)]
        seen = set()
        for idx, (t, j) in enumerate(mf):
            tags = []
            if t not in seen:
                tags.append(f"r{ks}_{t}")
                seen.add(t)
            if ks < 14 and idx < 3:
                tags.append(f"A{ks}_{j}")
            if tags:
                a.wait(*tags)
            d = vr(acc(j, t))
            c = "0" if ks == 0 else d
            x = ar((ks % NSL) * 12 + 4 * j) if ks < 14 else vr(T)
            b = ar(BFB + 24 * (ks & 1) + 4 * t)
            if t < 4:
                a(f"v_mfma_f32_16x16x32_bf16 {d}, {b}, {x}, {c}")
            else:
                a(f"v_mfma_f32_16x16x32_bf16 {d}, {x}, {b}, {c}")
            if idx % 2 == 0 and reads:
                a.lines.extend(reads.pop(0))
            elif idx % 2 == 1 and extra:
                a.lines.extend(extra.pop(0))
            elif ks >= 2:
                for _ in range(3):
                    if fill:
                        a.lines.extend(fill.pop(0))
        assert not reads and not extra
    assert not fill
    if PF & 1:
        a("buffer_load_dword v14, v13, s[16:19], s31 offen")
        a("buffer_load_dword v15, v13, s[16:19], s32 offen")
    a.stamp(3)
    a.nop(4)
    for j in range(3):
        k0, k1 = acc(j, 2), acc(j, 3)
        a(f"v_cvt_pk_bf16_f32 v{k0}, v{k0}, v{k0 + 1}")
        a(f"v_cvt_pk_bf16_f32 v{k0 + 1}, v{k0 + 2}, v{k0 + 3}")
        a(f"v_cvt_pk_bf16_f32 v{k0 + 2}, v{k1}, v{k1 + 1}")
        a(f"v_cvt_pk_bf16_f32 v{k0 + 3}, v{k1 + 2}, v{k1 + 3}")
        a.t(f"ds_write_b128 v10, {vr(k0)} offset:{j * 8192}", "kw")
    for j in range(3):
        for dh in range(2):
            v0_ = acc(j, 4 + dh)
            a(f"v_cvt_pk_bf16_f32 v{v0_}, v{v0_}, v{v0_ + 1}")
            a(f"v_cvt_pk_bf16_f32 v{v0_ + 1}, v{v0_ + 2}, v{v0_ + 3}")
            a.t(f"ds_write_b64 v12, {vr(v0_, 2)} offset:{j * 8192 + dh * 1024}", "kw")
    q0, q1 = acc(2, 0), acc(2, 1)
    a(f"v_cvt_pk_bf16_f32 v{Q}, v{q0}, v{q0 + 1}")
    a(f"v_cvt_pk_bf16_f32 v{Q + 1}, v{q0 + 2}, v{q0 + 3}")
    a(f"v_cvt_pk_bf16_f32 v{Q + 2}, v{q1}, v{q1 + 1}")
    a(f"v_cvt_pk_bf16_f32 v{Q + 3}, v{q1 + 2}, v{q1 + 3}")
    a.wait("kw")
    a("s_barrier")
    a.stamp(4)
    KR = 6
    VF = 24
    P = 16

    def krd(u):
        a.t(f"ds_read_b128 {ar(4 * (u % KR))}, v10 offset:{u * 1024}", f"k{u}")

    def vrd(n):
        a.t(f"ds_read_b128 {ar(VF + 4 * n)}, v11 offset:{n * 1024}", f"v{n}")
    for u in range(KR):
        krd(u)
    m0, m1 = T, T + 1
    for r in (P, P + 1, P + 36, P + 37):
        a(f"v_mov_b32 v{r}, 0")
    cs = (28 ** -0.5) * 1.4426950408889634
    a(f"s_mov_b32 s14, {f32bits(cs):#x}")
    vq = list(range(18))
    for u in range(17):
        a.wait(f"k{u}")
        a(f"v_mfma_f32_16x16x32_bf16 {vr(S + 4 * u)}, {ar(4 * (u % KR))}, {vr(Q)}, {vr(S + 4 * u)}")
        if u + KR < 17:
            krd(u + KR)
        opt = u - 3
        if opt >= 0:
            s_ = S + 4 * opt
            if opt == 0:
                a(f"v_max_f32 v{m0}, v{s_}, v{s_ + 1}")
                a(f"v_max_f32 v{m1}, v{s_ + 2}, v{s_ + 3}")
            else:
                a(f"v_max3_f32 v{m0}, v{m0}, v{s_}, v{s_ + 1}")
                a(f"v_max3_f32 v{m1}, v{m1}, v{s_ + 2}, v{s_ + 3}")
        if u >= 9:
            vrd(vq.pop(0))
    for _ in range(4):
        vrd(vq.pop(0))
    a.nop(2)
    for opt in (14, 15, 16):
        s_ = S + 4 * opt
        a(f"v_max3_f32 v{m0}, v{m0}, v{s_}, v{s_ + 1}")
        a(f"v_max3_f32 v{m1}, v{m1}, v{s_ + 2}, v{s_ + 3}")
    a(f"v_max_f32 v{m0}, v{m0}, v{m1}")
    for op in ("v_permlane16_swap_b32", "v_permlane32_swap_b32"):
        a(f"v_mov_b32 v{m1}, v{m0}")
        a.nop(2)
        a(f"{op} v{m0}, v{m1}")
        a.nop(2)
        a(f"v_max_f32 v{m0}, v{m0}, v{m1}")
    a(f"v_mul_f32 v{m0}, s14, v{m0}")
    a(f"v_sub_f32 v{m0}, 0, v{m0}")
    a.stamp(5)
    a.raw("@SNAP k12")
    a("s_cmp_eq_u32 s29, 1")
    a("s_cbranch_scc1 k1_odd")
    for par in range(2):
        if par:
            a.label("k1_odd")
        a.raw("@RESTORE k12")
        vq2 = list(vq)

        def soft(u):
            for r in range(4):
                a(f"v_fma_f32 v{S + 4 * u + r}, v{S + 4 * u + r}, s14, v{m0}")
            for r in range(4):
                a(f"v_exp_f32 v{S + 4 * u + r}, v{S + 4 * u + r}")

        def pack(u):
            a(f"v_cvt_pk_bf16_f32 v{P + 2 + 2 * u}, v{S + 4 * u}, v{S + 4 * u + 1}")
            a(f"v_cvt_pk_bf16_f32 v{P + 3 + 2 * u}, v{S + 4 * u + 2}, v{S + 4 * u + 3}")

        def pv(gm):
            pb = P + 4 * gm + (0 if par else 2)
            for dh in range(2):
                a.wait(f"v{2 * gm + dh}")
                c = "0" if gm == 0 else vr(O + 4 * dh)
                a(f"v_mfma_f32_16x16x32_bf16 {vr(O + 4 * dh)}, {ar(VF + 4 * (2 * gm + dh))}, {vr(pb)}, {c}")
        last = [(2 * gm if par else min(2 * gm + 1, 16)) for gm in range(9)]
        done = 0
        soft(0)
        for u in range(17):
            if u + 1 < 17:
                soft(u + 1)
            else:
                a("s_nop 0")
            pack(u)
            if vq2:
                vrd(vq2.pop(0))
            while done < 9 and last[done] < u:
                pv(done)
                done += 1
        a.nop(2)
        while done < 9:
            pv(done)
            done += 1
        a.nop(8)
        a(f"v_mov_b32 v{T}, v{O + 4}")
        a(f"v_mov_b32 v{T + 1}, v{O + 4}")
        a.nop(2)
        a(f"v_permlane32_swap_b32 v{T}, v{T + 1}")
        a.nop(2)
        a(f"v_mov_b32 v{T}, v{T + 1}")
        a.nop(2)
        a(f"v_permlane16_swap_b32 v{T}, v{T + 1}")
        a.nop(2)
        a(f"v_rcp_f32 v{T + 1}, v{T + 1}")
        a("s_nop 0")
        for r in range(8):
            a(f"v_mul_f32 v{O + r}, v{O + r}, v{T + 1}")
        for r in range(4):
            a(f"v_cvt_pk_bf16_f32 v{T + 4 + r}, v{O + 2 * r}, v{O + 2 * r + 1}")
        a(f"buffer_store_dwordx4 {vr(T + 4)}, v5, s[16:19], s30 offen")
        a.stamp(6)
        if STAMPS:
            a("s_waitcnt vmcnt(0)")
        a.stamp(7)
        a.stamp_flush("s[16:19]", 8, 1, 3)
        a(f"s_branch {L_end}")
    a.label(L_end)
    a("s_endpgm")
    return kd(name, 160, 96)


def gen_aug(a):
    a.label("k3_aug")
    a("s_sub_u32 s20, s2, 224")
    a("s_lshl_b32 s20, s20, 2")
    a("s_add_u32 s20, s20, s3")
    a("s_mul_i32 s23, s20, 149797")
    a("s_lshr_b32 s21, s23, 20")
    a("s_mul_i32 s23, s21, 7")
    a("s_sub_u32 s22, s20, s23")
    a(f"s_mul_i32 s24, s21, {WGU_CB}")
    a("s_lshl_b32 s22, s22, 10")
    a("s_add_u32 s24, s24, s22")
    a(f"s_add_u32 s24, s24, {WS_WGU:#x}")
    a("v_and_b32 v6, 31, v2")
    a("v_lshrrev_b32 v7, 5, v2")
    a("v_lshlrev_b32 v7, 4, v7")
    a(f"v_add_u32 v8, {WS_MODB + 4 * 896}, v7")
    a(f"v_add_u32 v9, {WS_MODB + 3 * 896}, v7")
    a("v_mov_b32 v10, 0x7fffffff")
    a("v_cmp_eq_u32 vcc, 0, v6")
    a("s_nop 1")
    a("v_cndmask_b32 v10, v10, v8, vcc")
    a("v_cmp_eq_u32 vcc, 1, v6")
    a("s_nop 1")
    a("v_cndmask_b32 v10, v10, v9, vcc")
    for s_ in range(28):
        a(f"buffer_load_dwordx4 {ar(4 * s_)}, v5, s[16:19], s24 offen")
        a("s_add_u32 s24, s24, 7168")
        a(f"buffer_load_dwordx4 {vr(64 + 4 * s_)}, v10, s[16:19], 0 offen offset:{s_ * 32}")
    for s_ in range(28):
        a(f"s_waitcnt vmcnt({2 * (27 - s_)})")
        c = "0" if s_ == 0 else vr(16, 16)
        a(f"v_mfma_f32_32x32x16_bf16 {vr(16, 16)}, {vr(64 + 4 * s_)}, {ar(4 * s_)}, {c}")
    a("v_cmp_gt_u32 vcc, 32, v2")
    a.nop(14)
    for r in range(2):
        a(f"v_cvt_pk_bf16_f32 v{40 + r}, v{16 + r}, v{16 + r}")
        a(f"v_lshlrev_b32 v{40 + r}, 16, v{40 + r}")
        a(f"v_sub_f32 v{40 + r}, v{16 + r}, v{40 + r}")
        a(f"v_cvt_pk_bf16_f32 v{40 + r}, v{16 + r}, v{40 + r}")
        a(f"v_cndmask_b32 v{40 + r}, 0, v{40 + r}, vcc")
    a("v_mov_b32 v42, 0")
    a("v_mov_b32 v43, 0")
    a("buffer_store_dwordx4 v[40:43], v5, s[16:19], s24 offen")


def gen_gemm_res(a, name, ks_total, ws_a, ws_b, res_from_x, gate_off, out_to_dout, D):
    a.kernel_begin(name)
    L_end = name + "_end"
    NG = ks_total // 2
    NS = D + 1
    a(f"s_cmp_ge_u32 s2, {224 if out_to_dout else 252}")
    a(f"s_cbranch_scc1 {L_end}")
    a.stamp(0)
    a("s_load_dwordx2 s[4:5], s[0:1], 0")
    a("s_load_dwordx2 s[6:7], s[0:1], 88")
    a("s_load_dwordx2 s[44:45], s[0:1], 72")
    a("v_lshrrev_b32 v1, 6, v0")
    a("v_and_b32 v2, 63, v0")
    a("s_nop 0")
    a("v_readfirstlane_b32 s3, v1")
    a("v_and_b32 v3, 15, v2")
    a("v_lshrrev_b32 v4, 4, v2")
    a("v_lshlrev_b32 v5, 4, v2")
    a("s_lshr_b32 s10, s2, 3")
    a("s_mul_i32 s8, s10, 149797")
    a("s_lshr_b32 s9, s8, 20")
    a("s_mul_i32 s8, s9, 7")
    a("s_sub_u32 s8, s10, s8")
    a("s_and_b32 s10, s2, 7")
    a("s_lshl_b32 s10, s10, 2")
    a("s_add_u32 s9, s9, s10")
    a("s_lshl_b32 s20, s9, 2")
    a("s_add_u32 s20, s20, s3")
    a(f"s_mul_i32 s20, s20, {ks_total * 1024}")
    a(f"s_add_u32 s20, s20, {ws_a:#x}")
    a("s_lshl_b32 s23, s3, 11")
    a(f"s_mul_i32 s24, s8, {ks_total * 4096}")
    a("s_add_u32 s24, s24, s23")
    a(f"s_add_u32 s24, s24, {ws_b:#x}")
    a("s_mov_b32 s25, s23")
    a("s_lshl_b32 s26, s9, 6")
    a("s_lshl_b32 s27, s3, 4")
    a("s_add_u32 s26, s26, s27")
    a("v_add_u32 v6, s26, v3")
    a("v_mul_u32_u24 v6, 896, v6")
    a("v_lshlrev_b32 v7, 4, v4")
    a("s_lshl_b32 s28, s8, 7")
    a("v_add3_u32 v6, v6, v7, s28")
    a("s_lshl_b32 s29, s9, 1")
    a("s_lshr_b32 s27, s3, 1")
    a("s_add_u32 s29, s29, s27")
    a("s_mul_i32 s29, s29, 28672")
    a("s_lshl_b32 s27, s8, 12")
    a("s_add_u32 s29, s29, s27")
    a("s_and_b32 s27, s3, 1")
    a("s_lshl_b32 s27, s27, 8")
    a("s_add_u32 s29, s29, s27")
    a(f"s_add_u32 s29, s29, {WS_X2:#x}")
    a("v_lshlrev_b32 v10, 9, v4")
    a("v_lshl_add_u32 v10, v3, 4, v10")
    a("v_lshlrev_b32 v8, 5, v4")
    a("s_lshl_b32 s30, s8, 8")
    a(f"s_add_u32 s30, s30, {WS_MOD + gate_off * 4}")
    a("s_waitcnt lgkmcnt(0)")
    a.srd(12, 4, 2048 * 896)
    a.srd(16, 6, WS_SIZE)
    a.srd(48, 44, 2048 * 896)
    if not out_to_dout:
        a("s_cmp_ge_u32 s2, 224")
        a("s_cbranch_scc1 k3_aug")

    def issue(g):
        base = (g % NS) * 8
        a("s_mov_b32 m0, s25")
        for q in range(2):
            ks = 2 * g + q
            a.t(f"buffer_load_dwordx4 {ar(base + 4 * q)}, v5, s[16:19], s20 offen offset:{(ks % 4) * 1024}", f"{name}g{g}")
        if g % 2 == 1:
            a("s_add_u32 s20, s20, 4096")
        for q in range(2):
            a.t(f"buffer_load_dwordx4 v5, s[16:19], s24 offen offset:{q * 1024} lds", f"{name}g{g}")
        a("s_add_u32 s24, s24, 8192")
        if g % NS == NS - 1:
            a("s_mov_b32 s25, s23")
        else:
            a("s_add_u32 s25, s25, 8192")

    def small_loads():
        if res_from_x:
            a.t(f"buffer_load_dwordx4 {vr(16)}, v6, s[12:15], 0 offen", name + "e")
            a.t(f"buffer_load_dwordx4 {vr(20)}, v6, s[12:15], 0 offen offset:64", name + "e")
        else:
            a.t(f"buffer_load_dwordx4 {vr(16)}, v10, s[16:19], s29 offen", name + "e")
            a.t(f"buffer_load_dwordx4 {vr(20)}, v10, s[16:19], s29 offen offset:2048", name + "e")
        for p_ in range(2):
            a.t(f"buffer_load_dwordx4 {vr(24 + 8 * p_)}, v8, s[16:19], s30 offen offset:{p_ * 128}", name + "e")
            a.t(f"buffer_load_dwordx4 {vr(28 + 8 * p_)}, v8, s[16:19], s30 offen offset:{p_ * 128 + 16}", name + "e")
        if not out_to_dout:
            a(f"s_add_u32 s30, s30, {(1792 - gate_off) * 4}")
            for p_ in range(2):
                a.t(f"buffer_load_dwordx4 {vr(112 + 8 * p_)}, v8, s[16:19], s30 offen offset:{p_ * 128}", name + "e")
                a.t(f"buffer_load_dwordx4 {vr(116 + 8 * p_)}, v8, s[16:19], s30 offen offset:{p_ * 128 + 16}", name + "e")

    ACC = 64
    BF = 80
    for g in range(min(D, NG)):
        issue(g)
    a.stamp(1)
    for g in range(NG):
        a.wait(f"{name}g{g}")
        a("s_barrier")
        if g == 0:
            a.stamp(2)
        for q in range(2):
            for t in range(4):
                a.t(f"ds_read_b128 {vr(BF + 16 * q + 4 * t)}, v5 offset:{(g % NS) * 8192 + q * 4096 + t * 1024}", f"{name}r{g}_{q}_{t}")
        if g + D < NG:
            issue(g + D)
        if g == 1:
            small_loads()
        for q in range(2):
            for t in range(4):
                a.wait(f"{name}r{g}_{q}_{t}")
                acc = vr(ACC + 4 * t)
                c = "0" if (g == 0 and q == 0) else acc
                a(f"v_mfma_f32_16x16x32_bf16 {acc}, {vr(BF + 16 * q + 4 * t)}, {ar((g % NS) * 8 + 4 * q)}, {c}")
        if g == NG - 2:
            a.wait(name + "e")
            for i in range(8):
                a(f"v_lshlrev_b32 v{128 + 2 * i}, 16, v{16 + i}")
                a(f"v_and_b32 v{129 + 2 * i}, 0xffff0000, v{16 + i}")
    a.stamp(3)
    a.nop(8)
    for i in range(8):
        a(f"v_pk_fma_f32 {vr(128 + 2 * i, 2)}, {vr(ACC + 2 * i, 2)}, {vr(24 + 2 * i, 2)}, {vr(128 + 2 * i, 2)}")
    for i in range(8):
        a(f"v_cvt_pk_bf16_f32 v{48 + i}, v{128 + 2 * i}, v{129 + 2 * i}")
    if out_to_dout:
        a(f"buffer_store_dwordx4 {vr(48)}, v6, s[48:51], 0 offen")
        a(f"buffer_store_dwordx4 {vr(52)}, v6, s[48:51], 0 offen offset:64")
    else:
        a(f"buffer_store_dwordx4 {vr(48)}, v10, s[16:19], s29 offen")
        a(f"buffer_store_dwordx4 {vr(52)}, v10, s[16:19], s29 offen offset:2048")
        a(f"s_add_u32 s29, s29, {WS_X2S - WS_X2:#x}")
        for i in range(8):
            a(f"v_lshlrev_b32 v{96 + 2 * i}, 16, v{48 + i}")
            a(f"v_and_b32 v{97 + 2 * i}, 0xffff0000, v{48 + i}")
        for i in range(8):
            a(f"v_pk_mul_f32 {vr(96 + 2 * i, 2)}, {vr(96 + 2 * i, 2)}, {vr(112 + 2 * i, 2)}")
        for i in range(8):
            a(f"v_cvt_pk_bf16_f32 v{56 + i}, v{96 + 2 * i}, v{97 + 2 * i}")
        a(f"buffer_store_dwordx4 {vr(56)}, v10, s[16:19], s29 offen")
        a(f"buffer_store_dwordx4 {vr(60)}, v10, s[16:19], s29 offen offset:2048")
        a("v_mov_b32 v40, 0x3f803f80")
        for r in range(41, 45):
            a(f"v_mov_b32 v{r}, 0")
        a("s_nop 0")
        for i in range(8):
            a(f"v_dot2_f32_bf16 v{41 + (i & 1)}, v{48 + i}, v40, v{41 + (i & 1)}")
            a(f"v_dot2_f32_bf16 v{43 + (i & 1)}, v{48 + i}, v{48 + i}, v{43 + (i & 1)}")
        a.nop(3)
        a("v_add_f32 v46, v41, v42")
        a("v_add_f32 v47, v43, v44")
        for op in ("v_permlane16_swap_b32", "v_permlane32_swap_b32"):
            a("v_mov_b32 v41, v46")
            a("v_mov_b32 v42, v47")
            a.nop(2)
            a(f"{op} v46, v41")
            a(f"{op} v47, v42")
            a.nop(2)
            a("v_add_f32 v46, v46, v41")
            a("v_add_f32 v47, v47, v42")
        a("v_lshlrev_b32 v41, 6, v3")
        a("s_lshl_b32 s27, s26, 6")
        a("s_lshl_b32 s28, s8, 3")
        a("s_add_u32 s27, s27, s28")
        a(f"s_add_u32 s27, s27, {WS_ST:#x}")
        a("buffer_store_dwordx2 v[46:47], v41, s[16:19], s27 offen")
    a.stamp(4)
    if STAMPS:
        a("s_waitcnt vmcnt(0)")
    a.stamp(5)
    a.stamp_flush("s[16:19]", 6, 5 if out_to_dout else 3)
    if not out_to_dout:
        a(f"s_branch {L_end}")
        gen_aug(a)
    a.label(L_end)
    a("s_endpgm")
    return kd(name, 144 if out_to_dout else 176, 8 * NS if out_to_dout else 112)


def gen_k4(a):
    name = "k4_ffn1_kernel"
    a.kernel_begin(name)
    L_end = "k4_end"
    NS = 11
    DEPTH = int(os.environ.get('K4D', '2'))
    a("s_cmp_ge_u32 s2, 256")
    a(f"s_cbranch_scc1 {L_end}")
    a.stamp(0)
    a("s_load_dwordx2 s[6:7], s[0:1], 88")
    a("v_lshrrev_b32 v1, 6, v0")
    a("v_and_b32 v2, 63, v0")
    a("s_nop 0")
    a("v_readfirstlane_b32 s3, v1")
    a("v_and_b32 v3, 31, v2")
    a("v_lshrrev_b32 v4, 5, v2")
    a("v_lshlrev_b32 v5, 4, v2")
    a("s_lshr_b32 s10, s2, 3")
    a("s_and_b32 s8, s10, 3")
    a("s_and_b32 s11, s2, 3")
    a("s_lshl_b32 s11, s11, 2")
    a("s_add_u32 s8, s8, s11")
    a("s_lshr_b32 s9, s10, 2")
    a("s_and_b32 s11, s2, 4")
    a("s_lshl_b32 s11, s11, 1")
    a("s_add_u32 s9, s9, s11")
    a("s_lshl_b32 s9, s9, 2")
    a("s_add_u32 s9, s9, s3")
    a("s_mul_i32 s12, s9, 28672")
    a(f"s_add_u32 s12, s12, {WS_X2S:#x}")
    a(f"s_mul_i32 s22, s8, {WGU_CB}")
    a(f"s_add_u32 s22, s22, {WS_WGU:#x}")
    a("s_mul_i32 s23, s3, 3584")
    a("s_mul_i32 s25, s3, 1792")
    a("s_add_u32 s24, s22, s25")
    a(f"s_add_u32 s24, s24, {28 * 7168}")
    a(f"s_add_u32 s25, s25, {(14 % NS) * 14336}")
    a("s_add_u32 s22, s22, s23")
    a("s_mov_b32 s26, s23")
    a("s_lshl_b32 s15, s9, 11")
    a(f"s_add_u32 s15, s15, {WS_ST:#x}")
    a("v_lshlrev_b32 v6, 6, v3")
    a("v_lshl_add_u32 v6, v4, 5, v6")
    a("v_add_u32 v7, 57344, v5")
    a("v_add_u32 v8, 114688, v5")
    a("s_waitcnt lgkmcnt(0)")
    a.stamp(6)
    a.srd(16, 6, WS_SIZE)
    ST = 16
    a.t(f"buffer_load_dwordx4 {vr(ST)}, v6, s[16:19], s15 offen", "st")
    a.t(f"buffer_load_dwordx4 {vr(ST + 4)}, v6, s[16:19], s15 offen offset:16", "st")

    def load_group(g):
        out = []

        def grp(f):
            old = a.capture()
            f()
            out.append(a.release(old))
        if g < 14:
            for s_ in (2 * g, 2 * g + 1):
                def fa(s_=s_):
                    if s_ % 2 == 1:
                        a("s_mov_b32 m0, s26")
                    a.t(f"buffer_load_dwordx4 {ar(4 * s_)}, v5, s[16:19], s12 offen offset:{(s_ % 4) * 1024}", f"g{g}")
                    if s_ % 4 == 3:
                        a("s_add_u32 s12, s12, 4096")
                grp(fa)
            for q in range(3):
                grp(lambda q=q: a.t(f"buffer_load_dwordx4 v5, s[16:19], s22 offen offset:{q * 1024} lds", f"g{g}"))

            def fl():
                a("s_mov_b32 exec_hi, 0")
                a.t("buffer_load_dwordx4 v5, s[16:19], s22 offen offset:3072 lds", f"g{g}")
                a("s_mov_b32 exec_hi, -1")
                a("s_add_u32 s22, s22, 14336")
                if g % NS == NS - 1:
                    a("s_mov_b32 s26, s23")
                else:
                    a("s_add_u32 s26, s26, 14336")
            grp(fl)
        else:
            def fg():
                a("s_mov_b32 m0, s25")
                a("s_nop 0")
                a.t("buffer_load_dwordx4 v5, s[16:19], s24 offen lds", f"g{g}")
                a("s_mov_b32 exec_hi, 0xffff")
                a.t("buffer_load_dwordx4 v5, s[16:19], s24 offen offset:1024 lds", f"g{g}")
                a("s_mov_b32 exec_hi, -1")
            grp(fg)
        return out

    for g in range(DEPTH):
        for f in load_group(g):
            a.lines.extend(f)
    a.stamp(1)
    BF = 64
    ACC = 128
    AUG = 24
    K1R, K2R, S2 = 28, 30, 32

    def rd(s_, t):
        g = s_ >> 1
        off = (g % NS) * 14336 + (s_ & 1) * 7168 + t * 1024
        base = "v5" if off < 57344 else ("v7" if off < 114688 else "v8")
        off %= 57344
        old = a.capture()
        a.t(f"ds_read_b128 {vr(BF + 28 * (s_ & 1) + 4 * t)}, {base} offset:{off}", f"r{s_}_{t}")
        return a.release(old)

    old = a.capture()
    a("v_cmp_eq_u32 vcc, 1, v4")
    a("s_nop 1")
    a.wait("st")
    a(f"v_cndmask_b32 v{ST + 6}, v{ST + 6}, 0, vcc")
    a(f"v_cndmask_b32 v{ST + 7}, v{ST + 7}, 0, vcc")
    a(f"v_add_f32 v{ST}, v{ST}, v{ST + 2}")
    a(f"v_add_f32 v{ST + 1}, v{ST + 1}, v{ST + 3}")
    a(f"v_add_f32 v{ST + 4}, v{ST + 4}, v{ST + 6}")
    a(f"v_add_f32 v{ST + 5}, v{ST + 5}, v{ST + 7}")
    a(f"v_add_f32 v{ST}, v{ST}, v{ST + 4}")
    a(f"v_add_f32 v{ST + 1}, v{ST + 1}, v{ST + 5}")
    a(f"v_mov_b32 v{ST + 2}, v{ST}")
    a(f"v_mov_b32 v{ST + 3}, v{ST + 1}")
    a("s_nop 1")
    a(f"v_permlane32_swap_b32 v{ST}, v{ST + 2}")
    a(f"v_permlane32_swap_b32 v{ST + 1}, v{ST + 3}")
    a("s_nop 1")
    a(f"v_add_f32 v{ST}, v{ST}, v{ST + 2}")
    a(f"v_add_f32 v{ST + 1}, v{ST + 1}, v{ST + 3}")
    inv = f32bits(1.0 / 448.0)
    mean, var = ST + 2, ST + 3
    a(f"v_mul_f32 v{mean}, {inv:#x}, v{ST}")
    a(f"v_mul_f32 v{var}, {inv:#x}, v{ST + 1}")
    a(f"v_fma_f32 v{var}, -v{mean}, v{mean}, v{var}")
    a(f"v_max_f32 v{var}, 0, v{var}")
    a(f"v_sub_f32 v{mean}, 0, v{mean}")
    a(f"v_cvt_pk_bf16_f32 v{AUG}, v{mean}, v{mean}")
    round_bf16_f32(a, f"v{var}", f"v{var}")
    a(f"v_add_f32 v{var}, {f32bits(1e-5):#x}, v{var}")
    round_bf16_f32(a, f"v{var}", f"v{var}")
    a(f"v_sqrt_f32 v{var}, v{var}")
    a("s_nop 0")
    a(f"v_cvt_pk_bf16_f32 v{AUG + 1}, v{var}, v{var}")
    a(f"v_lshlrev_b32 v{var}, 16, v{AUG + 1}")
    a(f"v_rcp_f32 v{mean}, v{var}")
    a(f"v_mul_f32 v{S2}, v{var}, v{var}")
    a(f"v_cndmask_b32 v{AUG}, v{AUG}, 0, vcc")
    a(f"v_cndmask_b32 v{AUG + 1}, v{AUG + 1}, 0, vcc")
    a(f"v_mov_b32 v{AUG + 2}, 0")
    a(f"v_mov_b32 v{AUG + 3}, 0")
    k1 = -2.0 * 0.7978845608028654 * 1.4426950408889634
    k2 = k1 * 0.044715
    a(f"v_mul_f32 v{K1R}, {f32bits(k1):#x}, v{mean}")
    a(f"v_mul_f32 v{K2R}, v{mean}, v{mean}")
    a(f"v_mul_f32 v{K2R}, v{K2R}, v{mean}")
    a(f"v_mul_f32 v{K2R}, {f32bits(k2):#x}, v{K2R}")
    a(f"v_mov_b32 v{S2 + 1}, v{S2}")
    a(f"v_mov_b32 v{K1R + 1}, v{K1R}")
    a(f"v_mov_b32 v{K2R + 1}, v{K2R}")
    a("v_lshrrev_b32 v9, 4, v3")
    a("v_mul_u32_u24 v9, 57344, v9")
    a("v_lshl_add_u32 v9, v4, 8, v9")
    a("v_and_b32 v10, 15, v3")
    a("v_lshl_add_u32 v9, v10, 4, v9")
    a("s_mul_i32 s30, s9, 114688")
    a("s_mul_i32 s31, s8, 3584")
    a("s_add_u32 s30, s30, s31")
    a(f"s_add_u32 s30, s30, {WS_HH:#x}")
    stat_lines = a.release(old)
    stat_groups = []
    cur = []
    n = 0
    for l in stat_lines:
        cur.append(l)
        if not l.strip().startswith("@"):
            n += 1
            if n == 2:
                stat_groups.append(cur)
                cur = []
                n = 0
    if cur:
        stat_groups.append(cur)

    a.wait("g0")
    a("s_barrier")
    a.stamp(2)
    for t in range(7):
        a.lines.extend(rd(0, t))
    for s_ in range(29):
        extra = []
        if s_ == 0:
            extra = load_group(DEPTH)
        if s_ % 2 == 1:
            g = (s_ + 1) // 2
            a.wait(f"g{g}")
            a("s_barrier")
            if g + DEPTH <= 14:
                extra = load_group(g + DEPTH)
        elif s_ >= 12:
            extra = stat_groups[:7]
            stat_groups = stat_groups[7:]
        for t in range(7):
            a.wait(f"r{s_}_{t}")
            acc = vr(ACC + 16 * t, 16)
            c = "0" if s_ == 0 else acc
            x = ar(4 * s_) if s_ < 28 else vr(AUG)
            a(f"v_mfma_f32_32x32x16_bf16 {acc}, {vr(BF + 28 * (s_ & 1) + 4 * t)}, {x}, {c}")
            if s_ < 28:
                a.lines.extend(rd(s_ + 1, t))
            if t < len(extra):
                a.lines.extend(extra[t])
        for f in extra[7:]:
            a.lines.extend(f)
        if s_ == 27 and (PF & 2):
            a("s_lshr_b32 s31, s2, 3")
            a("s_lshl_b32 s31, s31, 2")
            a("s_add_u32 s31, s31, s3")
            a("v_lshlrev_b32 v11, 6, v2")
            for q in range(4):
                a(f"s_add_u32 s32, s31, {128 * q}")
                a("s_min_u32 s32, s32, 391")
                a("s_lshl_b32 s32, s32, 12")
                a(f"s_add_u32 s32, s32, {WS_WD:#x}")
                a(f"buffer_load_dword v{12 + q}, v11, s[16:19], s32 offen")
    assert not stat_groups
    a.stamp(3)
    for t in range(7):
        G = ACC + 16 * t
        U = G + 8
        T = 40
        P = 48
        O = 56 + 4 * (t & 1)
        if t == 6:
            a.nop(4)
        for e in range(0, 8, 2):
            a(f"v_pk_mul_f32 {vr(T + e, 2)}, {vr(G + e, 2)}, {vr(G + e, 2)}")
        for e in range(0, 8, 2):
            a(f"v_pk_fma_f32 {vr(T + e, 2)}, {vr(T + e, 2)}, {vr(K2R, 2)}, {vr(K1R, 2)}")
        for e in range(0, 8, 2):
            a(f"v_pk_mul_f32 {vr(T + e, 2)}, {vr(T + e, 2)}, {vr(G + e, 2)}")
        for e in range(8):
            a(f"v_exp_f32 v{T + e}, v{T + e}")
        for e in range(0, 8, 2):
            a(f"v_pk_mul_f32 {vr(P + e, 2)}, {vr(G + e, 2)}, {vr(U + e, 2)}")
        for e in range(0, 8, 2):
            a(f"v_pk_fma_f32 {vr(T + e, 2)}, {vr(T + e, 2)}, {vr(S2, 2)}, {vr(S2, 2)}")
        for e in range(8):
            a(f"v_rcp_f32 v{T + e}, v{T + e}")
        a("s_nop 0")
        for e in range(0, 8, 2):
            a(f"v_pk_mul_f32 {vr(P + e, 2)}, {vr(P + e, 2)}, {vr(T + e, 2)}")
        for e in range(0, 8, 2):
            a(f"v_cvt_pk_bf16_f32 v{O + e // 2}, v{P + e}, v{P + e + 1}")
        a(f"buffer_store_dwordx4 {vr(O)}, v9, s[16:19], s30 offen offset:{t * 512}")
    a.stamp(4)
    if STAMPS:
        a("s_waitcnt vmcnt(0)")
    a.stamp(5)
    a.stamp_flush("s[16:19]", 7, 4)
    a.label(L_end)
    a("s_endpgm")
    return kd(name, 240, 112)


def main():
    a = Asm()
    K3D = int(os.environ.get("K3D", "3"))
    K5D = int(os.environ.get("K5D", "3"))
    hdr = open("cdna_kernels/" + NAME + ".s.ref").read().split("\n")
    head = [l for l in hdr if l.startswith(";") and "@launch" not in l and "Override" not in l and "grid=ceil" not in l]
    out = "\n".join(head) + "\n"
    out += "; @launch kernel=k0_prep_kernel grid=(256,1,1) block=(512,1,1) lds=61440\n"
    out += "; @launch kernel=k1_attn_kernel grid=(256,1,1) block=(512,1,1) lds=147456\n"
    out += f"; @launch kernel=k3_wo_kernel grid=(252,1,1) block=(256,1,1) lds=98304\n"
    out += "; @launch kernel=k4_ffn1_kernel grid=(256,1,1) block=(256,1,1) lds=157696\n"
    out += f"; @launch kernel=k5_ffn2_kernel grid=(224,1,1) block=(256,1,1) lds=98304\n"
    out += '.amdgcn_target "amdgcn-amd-amdhsa--gfx950"\n.text\n'
    kds = []
    kds.append(gen_k0(a))
    kds.append(gen_k12(a))
    kds.append(gen_gemm_res(a, "k3_wo_kernel", 16, WS_OP, WS_WO, True, 896, False, K3D))
    kds.append(gen_k4(a))
    kds.append(gen_gemm_res(a, "k5_ffn2_kernel", 56, WS_HH, WS_WD, False, 2240, True, K5D))
    out += a.text()
    out += '.section .rodata,"a"\n'
    out += "".join(kds)
    if STAMPS:
        open(SOUT, "w").write(out)
    else:
        open(OUT, "w").write(out)


if __name__ == "__main__":
    main()
```

```python
import struct
import sys
import os

STAMPS = len(sys.argv) > 1 and sys.argv[1] == "stamps"
NAME = "adaLN_cond__sliding_block__glu_gated_geglu__prompt"
OUT = os.environ.get("OUT", "v5.s")
SOUT = os.environ.get("SOUT", "stamps.s")

WS_MOD = 0x0
WS_WQKV = 0x100000
WS_WO = 0x300000
WS_WGU = 0x400000
WS_WD = 0x800000
WS_Q = 0xA00000
WS_K = 0xC00000
WS_VT = 0xE00000
WS_OP = 0x1000000
WS_X2 = 0x1200000
WS_HH = 0x1400000
WS_XH = 0x1C00000
WS_ST = 0x1E00000
WS_X2S = 0x2000000
WS_MODB = 0x8000
WS_SIZE = 0x3000000
WGU_CB = 29 * 7168
PF = int(os.environ.get("PF", "3"))
WQ_HS = 98304

KA_X, KA_WQKV, KA_WO, KA_BX, KA_WG, KA_WU, KA_WD, KA_C, KA_WMOD, KA_OUT, KA_DBG, KA_WS = [8 * i for i in range(12)]


def f32bits(x):
    return struct.unpack("<I", struct.pack("<f", x))[0]


class Asm:
    def __init__(self):
        self.lines = []
        self.uid = 0

    def __call__(self, s):
        self.lines.append("    " + s)

    def label(self, l):
        self.lines.append(l + ":")

    def newlabel(self, p="L"):
        self.uid += 1
        return f"{p}_{self.uid}"

    def raw(self, s):
        self.lines.append(s)

    def nop(self, n):
        while n > 0:
            k = min(n, 16)
            self(f"s_nop {k - 1}")
            n -= k

    def srd(self, d, b, nbytes):
        self(f"s_mov_b32 s{d}, s{b}")
        self(f"s_and_b32 s{d + 1}, s{b + 1}, 0xffff")
        self(f"s_mov_b32 s{d + 2}, {nbytes:#x}")
        self(f"s_mov_b32 s{d + 3}, 0x00020000")

    def stamp(self, i):
        if not STAMPS:
            return
        self(f"s_memtime s[{70 + 2 * i}:{71 + 2 * i}]")
        if i == 0:
            self("s_memrealtime s[94:95]")
        self("s_waitcnt lgkmcnt(0)")

    def stamp_flush(self, srd, n, kidx, wsh=2):
        if not STAMPS:
            return
        if wsh == 3:
            self("s_and_b32 s3, s3, 3")
        self("s_lshl_b32 s68, s2, 2")
        self("s_add_u32 s68, s68, s3")
        self("s_lshl_b32 s68, s68, 6")
        self(f"s_add_u32 s68, s68, {0x1B00000 + kidx * 0x10000:#x}")
        self("v_mov_b32 v1, 0")
        self("s_memrealtime s[96:97]")
        self("s_waitcnt lgkmcnt(0)")
        for i, r in ((14, 94), (15, 96)):
            self(f"v_mov_b32 v2, s{r}")
            self(f"buffer_store_dword v2, v1, {srd}, s68 offen offset:{i * 4}")
            self("s_nop 1")
        for i in range(n):
            self(f"v_mov_b32 v2, s{70 + 2 * i}")
            self(f"buffer_store_dword v2, v1, {srd}, s68 offen offset:{i * 4}")
            self("s_nop 1")

    def kernel_begin(self, name):
        self.raw(f".globl {name}")
        self.raw(".p2align 8")
        self.raw(f".type {name},@function")
        self.label(name)

    def t(self, s, tag):
        self.lines.append("    " + s + " ;@T:" + tag)

    def wait(self, *tags):
        self.lines.append("@WAIT " + " ".join(tags))

    def capture(self):
        old = self.lines
        self.lines = []
        return old

    def release(self, old):
        cap = self.lines
        self.lines = old
        return cap

    def text(self):
        out = []
        vm, ds = [], []
        snaps = {}
        for l in self.lines:
            st = l.strip()
            if st.startswith("@SNAP"):
                snaps[st.split()[1]] = (list(vm), list(ds))
                continue
            if st.startswith("@RESTORE"):
                a_, b_ = snaps[st.split()[1]]
                vm, ds = list(a_), list(b_)
                continue
            if st.startswith("@WAIT"):
                tags = st.split()[1:]
                nv = nd = None
                for tg in tags:
                    iv = max([i for i, x in enumerate(vm) if x == tg], default=None)
                    idd = max([i for i, x in enumerate(ds) if x == tg], default=None)
                    assert iv is not None or idd is not None, tg
                    if iv is not None:
                        n = len(vm) - 1 - iv
                        nv = n if nv is None else min(nv, n)
                    if idd is not None:
                        n = len(ds) - 1 - idd
                        nd = n if nd is None else min(nd, n)
                w = "    s_waitcnt"
                if nv is not None:
                    w += f" vmcnt({min(nv, 63)})"
                if nd is not None:
                    w += f" lgkmcnt({min(nd, 15)})"
                out.append(w)
                continue
            tag = None
            if ";@T:" in l:
                l, tag = l.split(" ;@T:")
            if st.startswith("buffer_") or st.startswith("global_"):
                vm.append(tag)
            elif st.startswith("ds_"):
                ds.append(tag)
            out.append(l)
        return "\n".join(out) + "\n"


CPF = int(os.environ.get("CPF", "0"))


def code_pf(a, sid, first, sb, vt, vl):
    lab = a.newlabel("pc")
    a(f"s_getpc_b64 s[{sb}:{sb + 1}]")
    a.label(lab)
    a(f"s_add_u32 s{sb}, s{sb}, {first}-{lab}")
    a(f"s_addc_u32 s{sb + 1}, s{sb + 1}, 0")
    a(f"s_and_b32 s{sb + 1}, s{sb + 1}, 0xffff")
    a(f"s_mov_b32 s{sb + 2}, code_end-{first}")
    a(f"s_mov_b32 s{sb + 3}, 0x00020000")
    a(f"s_lshl_b32 s{sid}, s{sid}, 12")
    a(f"v_lshlrev_b32 v{vt}, 6, v{vl}")
    a(f"buffer_load_dword v{vt}, v{vt}, s[{sb}:{sb + 3}], s{sid} offen")


def merge(primary, filler, per, key="v_mfma"):
    out = []
    fi = 0
    acc = 0.0
    for l in primary:
        out.append(l)
        if l.strip().startswith(key):
            acc += per
            while acc >= 1.0 and fi < len(filler):
                f = filler[fi]
                fi += 1
                out.append(f)
                if not f.strip().startswith("@"):
                    acc -= 1.0
    out.extend(filler[fi:])
    return out


def merge_any(primary, filler, every):
    out = []
    fi = 0
    n = 0
    for l in primary:
        out.append(l)
        if not l.strip().startswith("@"):
            n += 1
            if n % every == 0 and fi < len(filler):
                out.extend(filler[fi])
                fi += 1
    for f in filler[fi:]:
        out.extend(f)
    return out


def kd(name, vgpr, agpr, sgpr=102):
    acc = (vgpr + 3) // 4 * 4
    nfv = acc + agpr if agpr else vgpr
    return f""".p2align 6
.amdhsa_kernel {name}
  .amdhsa_next_free_vgpr {nfv}
  .amdhsa_next_free_sgpr {sgpr}
  .amdhsa_accum_offset {acc}
  .amdhsa_group_segment_fixed_size 0
  .amdhsa_kernarg_size 96
  .amdhsa_user_sgpr_count 2
  .amdhsa_user_sgpr_kernarg_segment_ptr 1
  .amdhsa_system_sgpr_workgroup_id_x 1
.end_amdhsa_kernel
"""


def vr(b, n=4):
    return f"v[{b}:{b + n - 1}]"


def ar(b, n=4):
    return f"a[{b}:{b + n - 1}]"


def round_bf16_f32(a, dst, src, tmp=None):
    a(f"v_cvt_pk_bf16_f32 {dst}, {src}, {src}")
    a(f"v_lshlrev_b32 {dst}, 16, {dst}")


def gen_k0(a):
    name = "k0_prep_kernel"
    a.kernel_begin(name)
    L_end = "k0_end"
    a("s_cmp_ge_u32 s2, 256")
    a(f"s_cbranch_scc1 {L_end}")
    a.stamp(0)
    a("s_load_dwordx4 s[4:7], s[0:1], 8")
    a("s_load_dwordx4 s[8:11], s[0:1], 32")
    a("s_load_dwordx2 s[12:13], s[0:1], 48")
    a("s_load_dwordx4 s[16:19], s[0:1], 56")
    a("s_load_dwordx2 s[14:15], s[0:1], 88")
    a("s_load_dwordx2 s[34:35], s[0:1], 0")
    a("v_lshrrev_b32 v1, 6, v0")
    a("v_and_b32 v2, 63, v0")
    a("s_nop 0")
    a("v_readfirstlane_b32 s3, v1")
    a("v_and_b32 v3, 15, v2")
    a("v_lshrrev_b32 v4, 4, v2")
    a("v_lshlrev_b32 v7, 4, v2")
    a("s_waitcnt lgkmcnt(0)")
    a.srd(40, 14, WS_SIZE)
    a("s_cmp_lt_u32 s2, 14")
    a("s_cbranch_scc1 k0_mod")
    a("s_cmp_ge_u32 s2, 224")
    a("s_cbranch_scc1 k0_xh")
    a("s_cmp_ge_u32 s2, 217")
    a(f"s_cbranch_scc1 {L_end}")
    STR = 144
    a("s_sub_u32 s20, s2, 14")
    a("s_lshl_b32 s20, s20, 3")
    a("s_add_u32 s20, s20, s3")
    a("v_lshrrev_b32 v5, 3, v2")
    a("v_and_b32 v6, 7, v2")
    a(f"s_mul_i32 s28, s3, {32 * STR}")
    a(f"v_mul_u32_u24 v8, {STR}, v5")
    a("v_lshl_add_u32 v8, v6, 4, v8")
    a("v_add_u32 v8, s28, v8")
    a("v_bfe_u32 v9, v2, 2, 2")
    a("v_lshl_add_u32 v9, v4, 3, v9")
    a(f"v_mul_u32_u24 v9, {STR}, v9")
    a("v_add_u32 v9, s28, v9")
    a("v_and_b32 v11, 3, v2")
    a("v_lshl_add_u32 v12, v11, 4, v9")
    a("v_lshlrev_b32 v6, 4, v6")
    a("v_mov_b32 v18, 0x7fffffff")
    a("s_cmp_lt_u32 s20, 336")
    a("s_cbranch_scc1 k0_pk_qkv")
    a("s_cmp_lt_u32 s20, 448")
    a("s_cbranch_scc1 k0_pk_wo")
    a("s_cmp_lt_u32 s20, 1232")
    a("s_cbranch_scc1 k0_pk_wgu")
    a("s_branch k0_pk_wd")

    def divconst(dst_q, dst_r, src, d, tmp):
        m = (1 << 20) // d + 1
        a(f"s_mul_i32 s{tmp}, s{src}, {m}")
        a(f"s_lshr_b32 s{dst_q}, s{tmp}, 20")
        a(f"s_mul_i32 s{tmp}, s{dst_q}, {d}")
        a(f"s_sub_u32 s{dst_r}, s{src}, s{tmp}")

    def pack_body(rs, dst_offs, qkv=False, alt_last=False, hfs=4):
        for n in range(4):
            vo = 14 if (alt_last and n == 3) else 10
            a(f"buffer_load_dwordx4 {vr(20 + 4 * n)}, v{vo}, s[44:47], s26 offen")
            if n < 3:
                a(f"s_add_u32 s26, s26, {8 * rs}")
        for n in range(4):
            a(f"s_waitcnt vmcnt({3 - n})")
            a(f"ds_write_b128 v8, {vr(20 + 4 * n)} offset:{n * 8 * STR}")
        a("s_waitcnt lgkmcnt(0)")
        for t in range(4):
            for hf in range(2):
                if qkv:
                    av, off = [(13, 0), (15, 0), (13, 56), (16, 0)][t]
                else:
                    av, off = 12, (t >> 1) * 64 + (t & 1) * 8
                a(f"ds_read_b64_tr_b16 {vr(40 + 4 * t + 2 * hf, 2)}, v{av} offset:{off + hf * hfs * STR}")
        a.stamp(1)
        for t in range(4):
            a(f"s_waitcnt lgkmcnt({6 - 2 * t})")
            so, io = dst_offs[t]
            a(f"buffer_store_dwordx4 {vr(40 + 4 * t)}, v7, s[40:43], {so} offen offset:{io}")
        a.stamp(2)
        if STAMPS:
            a("s_waitcnt vmcnt(0)")
        a.stamp(3)
        a.stamp(4)
        a.stamp_flush("s[40:43]", 5, 0, 3)
        a(f"s_branch {L_end}")

    a.label("k0_pk_qkv")
    a.srd(44, 4, 448 * 1344 * 2)
    a.srd(48, 18, 448 * 2688 * 2)
    a.srd(52, 16, 896)
    divconst(21, 22, 20, 24, 23)
    a("s_mul_i32 s24, s3, 56")
    a("v_add_u32 v56, s24, v2")
    a("v_lshlrev_b32 v56, 1, v56")
    a("buffer_load_ushort v57, v56, s[52:55], 0 offen")
    a("s_mul_i32 s25, s24, 5376")
    a("s_lshl_b32 s23, s21, 6")
    a("s_add_u32 s25, s25, s23")
    a("v_mul_u32_u24 v58, 5376, v5")
    a("v_add_u32 v58, v58, v6")
    a("v_bfe_u32 v59, v2, 2, 1")
    a("v_mul_u32_u24 v59, 832, v59")
    a("v_add_u32 v58, v58, v59")
    for n in range(7):
        a(f"buffer_load_dwordx4 {vr(64 + 4 * n)}, v58, s[48:51], s25 offen")
        if n != 6:
            a("s_add_u32 s25, s25, 43008")
    a("s_mul_i32 s24, s22, 112")
    a("s_mul_i32 s26, s21, 86016")
    a("s_add_u32 s26, s26, s24")
    a("v_mul_u32_u24 v10, 2688, v5")
    a("v_add_u32 v10, v10, v6")
    a("v_cmp_eq_u32 vcc, 112, v6")
    a("v_lshl_add_u32 v13, v11, 3, v9")
    a("v_add_u32 v15, 32, v13")
    a("v_cndmask_b32 v10, v10, v18, vcc")
    a("v_add_u32 v16, 88, v13")
    a("v_add_u32 v17, 112, v9")
    a("v_cmp_eq_u32 vcc, 3, v11")
    a("s_and_b32 s24, s22, 7")
    a("s_lshr_b32 s23, s22, 3")
    a("v_cndmask_b32 v15, v15, v17, vcc")
    a("v_cndmask_b32 v16, v16, v17, vcc")
    for n in range(4):
        a(f"buffer_load_dwordx4 {vr(20 + 4 * n)}, v10, s[44:47], s26 offen")
        if n < 3:
            a(f"s_add_u32 s26, s26, {8 * 2688}")
    a(f"s_mul_i32 s30, s24, {2 * WQ_HS}")
    a("s_lshl_b32 s24, s23, 11")
    a("s_add_u32 s30, s30, s24")
    a(f"s_add_u32 s30, s30, {WS_WQKV:#x}")
    a("s_lshr_b32 s24, s21, 2")
    a("s_lshl_b32 s24, s24, 8")
    a("s_and_b32 s25, s21, 3")
    a("s_lshl_b32 s25, s25, 2")
    a("s_add_u32 s24, s24, s25")
    a("s_add_u32 s32, s30, s24")
    a(f"s_add_u32 s32, s32, {14 * 6144}")
    a("s_mul_i32 s24, s21, 6144")
    a("s_add_u32 s30, s30, s24")
    a(f"s_add_u32 s31, s30, {WQ_HS}")
    a("v_lshlrev_b32 v59, 2, v5")
    a("s_waitcnt vmcnt(11)")
    a("v_lshlrev_b32 v57, 16, v57")
    a("v_mul_f32 v60, 0xbfb8aa3b, v57")
    a("v_exp_f32 v60, v60")
    a("s_nop 0")
    a("v_add_f32 v60, 1.0, v60")
    a("v_rcp_f32 v60, v60")
    a("s_nop 0")
    a("v_mul_f32 v60, v57, v60")
    round_bf16_f32(a, "v60", "v60")
    for n in range(7):
        a(f"v_add_u32 v61, {32 * n}, v59")
        a(f"ds_bpermute_b32 v{92 + n}, v61, v60")
    for j in range(8):
        a(f"v_mov_b32 v{100 + j}, 0")
    a("s_waitcnt lgkmcnt(0)")
    for n in range(7):
        a(f"s_waitcnt vmcnt({10 - n})")
        for d in range(4):
            x = 64 + 4 * n + d
            a(f"v_lshlrev_b32 v61, 16, v{x}")
            a(f"v_and_b32 v62, 0xffff0000, v{x}")
            a(f"v_fmac_f32 v{100 + 2 * d}, v{92 + n}, v61")
            a(f"v_fmac_f32 v{101 + 2 * d}, v{92 + n}, v62")
    a("v_and_b32 v61, 1, v4")
    a("v_lshlrev_b32 v61, 1, v61")
    for p_ in range(4):
        a(f"v_permlane32_swap_b32 v{100 + 2 * p_}, v{101 + 2 * p_}")
    a("v_lshrrev_b32 v62, 1, v4")
    a("v_or_b32 v61, v61, v62")
    for p_ in range(4):
        a(f"v_add_f32 v{108 + p_}, v{100 + 2 * p_}, v{101 + 2 * p_}")
    a("v_lshl_add_u32 v61, v61, 2, v6")
    a("v_add_u32 v61, v61, v6")
    a("v_permlane16_swap_b32 v108, v109")
    a("v_permlane16_swap_b32 v110, v111")
    PART, FIN = 36864, 38912
    a("s_lshl_b32 s23, s3, 8")
    a(f"s_add_u32 s24, s23, {PART}")
    a("v_add_f32 v112, v108, v109")
    a("v_add_f32 v113, v110, v111")
    a("v_add_u32 v61, s24, v61")
    a("s_nop 0")
    a("v_add_f32_dpp v112, v112, v112 row_ror:8 row_mask:0xf bank_mask:0xf")
    a("v_add_f32_dpp v113, v113, v113 row_ror:8 row_mask:0xf bank_mask:0xf")
    a("ds_write2_b32 v61, v112, v113 offset0:0 offset1:4")
    for n in range(4):
        a(f"s_waitcnt vmcnt({3 - n})")
        a(f"ds_write_b128 v8, {vr(20 + 4 * n)} offset:{n * 8 * STR}")
    a("s_waitcnt lgkmcnt(0)")
    a("s_barrier")
    a("v_lshlrev_b32 v61, 2, v2")
    for w in range(8):
        a(f"ds_read_b32 v{100 + w}, v61 offset:{PART + w * 256}")
    for t in range(4):
        for hf in range(2):
            av, off = [(13, 0), (15, 0), (13, 56), (16, 0)][t]
            a(f"ds_read_b64_tr_b16 {vr(40 + 4 * t + 2 * hf, 2)}, v{av} offset:{off + hf * 4 * STR}")
    a(f"s_add_u32 s24, s23, {FIN}")
    a("v_add_u32 v61, s24, v61")
    a("v_lshlrev_b32 v62, 5, v4")
    a("v_add_u32 v62, s24, v62")
    a("v_cmp_le_u32 vcc, 32, v2")
    a("s_waitcnt lgkmcnt(8)")
    a("v_add_f32 v100, v100, v101")
    a("v_add_f32 v102, v102, v103")
    a("v_add_f32 v104, v104, v105")
    a("v_add_f32 v106, v106, v107")
    a("v_add_f32 v100, v100, v102")
    a("v_add_f32 v104, v104, v106")
    a("v_add_f32 v100, v100, v104")
    round_bf16_f32(a, "v100", "v100")
    a("v_add_f32 v101, 1.0, v100")
    round_bf16_f32(a, "v101", "v101")
    a("v_cndmask_b32 v100, v100, v101, vcc")
    a("ds_write_b32 v61, v100")
    a("s_waitcnt lgkmcnt(0)")
    SV, CV = 64, 72
    a(f"ds_read_b128 {vr(SV)}, v62")
    a(f"ds_read_b128 {vr(SV + 4)}, v62 offset:16")
    a(f"ds_read_b128 {vr(CV)}, v62 offset:128")
    a(f"ds_read_b128 {vr(CV + 4)}, v62 offset:144")
    a("v_and_b32 v61, 1, v4")
    a(f"v_mul_u32_u24 v61, {WQ_HS}, v61")
    a("v_lshrrev_b32 v63, 1, v4")
    a("v_lshl_add_u32 v61, v63, 10, v61")
    a("v_lshl_add_u32 v61, v3, 4, v61")
    a("v_and_b32 v63, 0x2f, v2")
    a("v_cmp_eq_u32 vcc, 0x2c, v63")
    for t in range(4):
        a(f"v_mov_b32 v{96 + t}, 0")
    a("s_waitcnt lgkmcnt(0)")
    for t in range(4):
        for d in range(4):
            x = 40 + 4 * t + d
            a(f"v_lshlrev_b32 v{80 + 2 * d}, 16, v{x}")
            a(f"v_and_b32 v{81 + 2 * d}, 0xffff0000, v{x}")
        for e in range(8):
            a(f"v_fmac_f32 v{96 + t}, v{80 + e}, v{SV + e}")
        for e in range(8):
            a(f"v_mul_f32 v{80 + e}, v{80 + e}, v{CV + e}")
        for d in range(4):
            a(f"v_cvt_pk_bf16_f32 v{40 + 4 * t + d}, v{80 + 2 * d}, v{81 + 2 * d}")
        a(f"buffer_store_dwordx4 {vr(40 + 4 * t)}, v7, s[40:43], s{30 + (t >> 1)} offen offset:{(t & 1) * 1024}")
    a("v_permlane32_swap_b32 v96, v97")
    a("v_permlane32_swap_b32 v98, v99")
    a.nop(2)
    a("v_add_f32 v96, v96, v97")
    a("v_add_f32 v98, v98, v99")
    a.nop(2)
    a("v_permlane16_swap_b32 v96, v98")
    a.nop(2)
    a("v_add_f32 v96, v96, v98")
    a("v_cvt_pk_bf16_f32 v97, v96, v96")
    a("v_lshlrev_b32 v97, 16, v97")
    a("v_sub_f32 v97, v96, v97")
    a("v_cvt_pk_bf16_f32 v96, v96, v97")
    a("s_sub_u32 s24, s20, 16")
    a("s_cmp_lt_u32 s24, 8")
    a("s_cselect_b64 s[24:25], vcc, 0")
    a("v_mov_b32 v97, 0x3f80")
    a("v_mov_b32 v98, 0")
    a("v_mov_b32 v99, 0")
    a("v_cndmask_b32 v96, v96, v97, s[24:25]")
    a("buffer_store_dword v96, v61, s[40:43], s32 offen")
    a("s_cmp_lg_u32 s21, 13")
    a("s_cbranch_scc1 k0_qkv_fin")
    a("buffer_store_dwordx2 v[98:99], v61, s[40:43], s32 offen offset:4")
    a.label("k0_qkv_fin")
    a.stamp(1)
    a.stamp(2)
    if STAMPS:
        a("s_waitcnt vmcnt(0)")
    a.stamp(3)
    a.stamp(4)
    a.stamp_flush("s[40:43]", 5, 0, 3)
    a(f"s_branch {L_end}")

    a.label("k0_pk_wo")
    a.srd(44, 6, 448 * 448 * 2)
    a("s_sub_u32 s20, s20, 336")
    divconst(21, 22, 20, 7, 23)
    a("s_mul_i32 s26, s21, 25088")
    a("s_lshl_b32 s24, s22, 7")
    a("s_add_u32 s26, s26, s24")
    a("v_mul_u32_u24 v10, 896, v5")
    a("v_add_u32 v10, v10, v6")
    a("v_cmp_le_u32 vcc, 4, v5")
    a("s_lshl_b32 s30, s22, 4")
    a("s_add_u32 s30, s30, s21")
    a("v_cndmask_b32 v14, v10, v18, vcc")
    a("s_lshl_b32 s30, s30, 12")
    a(f"s_add_u32 s30, s30, {WS_WO:#x}")
    a(f"v_mul_u32_u24 v13, {4 * STR}, v4")
    a("v_sub_u32 v12, v12, v13")
    pack_body(896, [("s30", t * 1024) for t in range(4)], alt_last=True, hfs=16)

    a.label("k0_pk_wgu")
    a.srd(44, 8, 448 * 1792 * 2)
    a.srd(48, 10, 448 * 1792 * 2)
    a("s_sub_u32 s20, s20, 448")
    divconst(21, 22, 20, 28, 23)
    a("s_mul_i32 s26, s21, 57344")
    a("s_lshl_b32 s24, s22, 7")
    a("s_add_u32 s26, s26, s24")
    a("s_add_u32 s27, s26, 28672")
    a("v_mul_u32_u24 v10, 3584, v5")
    a("v_add_u32 v10, v10, v6")
    a(f"buffer_load_dwordx4 {vr(20)}, v10, s[44:47], s26 offen")
    a(f"buffer_load_dwordx4 {vr(24)}, v10, s[44:47], s27 offen")
    a(f"buffer_load_dwordx4 {vr(28)}, v10, s[48:51], s26 offen")
    a(f"buffer_load_dwordx4 {vr(32)}, v10, s[48:51], s27 offen")
    a("v_and_b32 v13, 1, v4")
    a("v_lshrrev_b32 v14, 1, v4")
    a("v_lshlrev_b32 v13, 4, v13")
    a("v_lshl_add_u32 v13, v14, 3, v13")
    a("v_bfe_u32 v14, v2, 2, 2")
    a("v_add_u32 v13, v13, v14")
    a(f"v_mul_u32_u24 v13, {STR}, v13")
    a("v_and_b32 v14, 1, v11")
    a("v_lshl_add_u32 v13, v14, 4, v13")
    a("v_lshrrev_b32 v14, 1, v11")
    a("v_lshl_add_u32 v13, v14, 3, v13")
    a("v_add_u32 v13, s28, v13")
    a("s_mul_i32 s25, s21, 7168")
    a(f"s_add_u32 s25, s25, {WS_WGU:#x}")
    a("s_lshl_b32 s24, s22, 2")
    for t in range(4):
        a(f"s_add_u32 s20, s24, {t}")
        divconst(21, 22, 20, 7, 23)
        a(f"s_mul_i32 s{30 + t}, s21, {WGU_CB}")
        a("s_lshl_b32 s22, s22, 10")
        a(f"s_add_u32 s{30 + t}, s{30 + t}, s22")
        a(f"s_add_u32 s{30 + t}, s{30 + t}, s25")
    for n in range(4):
        a(f"s_waitcnt vmcnt({3 - n})")
        a(f"ds_write_b128 v8, {vr(20 + 4 * n)} offset:{n * 8 * STR}")
    a("s_waitcnt lgkmcnt(0)")
    for t in range(4):
        for hf in range(2):
            a(f"ds_read_b64_tr_b16 {vr(40 + 4 * t + 2 * hf, 2)}, v13 offset:{t * 32 + hf * 4 * STR}")
    for t in range(4):
        a(f"s_waitcnt lgkmcnt({6 - 2 * t})")
        a(f"buffer_store_dwordx4 {vr(40 + 4 * t)}, v7, s[40:43], s{30 + t} offen")
    a.stamp(1)
    a.stamp(2)
    if STAMPS:
        a("s_waitcnt vmcnt(0)")
    a.stamp(3)
    a.stamp(4)
    a.stamp_flush("s[40:43]", 5, 0, 3)
    a(f"s_branch {L_end}")

    a.label("k0_pk_wd")
    a.srd(44, 12, 1792 * 448 * 2)
    a("s_sub_u32 s20, s20, 1232")
    divconst(21, 22, 20, 7, 23)
    a("s_mul_i32 s26, s21, 28672")
    a("s_lshl_b32 s24, s22, 7")
    a("s_add_u32 s26, s26, s24")
    a("v_mul_u32_u24 v10, 896, v5")
    a("v_add_u32 v10, v10, v6")
    a("s_mul_i32 s30, s22, 56")
    a("s_add_u32 s30, s30, s21")
    a("s_lshl_b32 s30, s30, 12")
    a(f"s_add_u32 s30, s30, {WS_WD:#x}")
    pack_body(896, [("s30", t * 1024) for t in range(4)])

    a.label("k0_xh")
    a("s_cmp_ge_u32 s3, 4")
    if CPF & 1:
        a("s_cbranch_scc0 k0_xh2")
        a("s_sub_u32 s20, s2, 224")
        a("s_lshr_b32 s20, s20, 3")
        a("s_lshl_b32 s20, s20, 2")
        a("s_add_u32 s20, s20, s3")
        a("s_sub_u32 s20, s20, 4")
        code_pf(a, 20, "k1_attn_kernel", 44, 5, 2)
        a("s_endpgm")
        a.label("k0_xh2")
    else:
        a(f"s_cbranch_scc1 {L_end}")
    a.srd(44, 34, 2048 * 896)
    a("s_sub_u32 s20, s2, 224")
    a("s_lshr_b32 s20, s20, 3")
    a("s_lshl_b32 s20, s20, 2")
    a("s_add_u32 s20, s20, s3")
    a("s_and_b32 s21, s2, 7")
    a("s_lshl_b32 s21, s21, 4")
    a("s_add_u32 s20, s20, s21")
    a("s_mul_i32 s26, s20, 14336")
    a(f"s_add_u32 s30, s26, {WS_XH:#x}")
    VX = 64
    for n in range(14):
        a(f"buffer_load_dwordx4 {vr(VX + 4 * n)}, v7, s[44:47], s26 offen offset:{(n % 4) * 1024}")
        if n % 4 == 3:
            a("s_add_u32 s26, s26, 4096")
    a("s_mul_i32 s28, s3, 14848")
    for n in range(14):
        a(f"v_add_u32 v{20 + n}, {64 * n}, v2")
        a(f"v_mul_u32_u24 v34, 1171, v{20 + n}")
        a("v_lshrrev_b32 v34, 16, v34")
        a(f"v_lshlrev_b32 v{20 + n}, 4, v{20 + n}")
        a(f"v_lshl_add_u32 v{20 + n}, v34, 5, v{20 + n}")
        a(f"v_add_u32 v{20 + n}, s28, v{20 + n}")
    a("v_mul_u32_u24 v9, 928, v3")
    a("v_lshl_add_u32 v9, v4, 4, v9")
    a("v_add_u32 v9, s28, v9")
    for n in range(14):
        a(f"s_waitcnt vmcnt({13 - n})")
        a(f"ds_write_b128 v{20 + n}, {vr(VX + 4 * n)}")
    a("s_waitcnt lgkmcnt(0)")
    for ks in range(14):
        a(f"ds_read_b128 {vr(VX + 4 * ks)}, v9 offset:{ks * 64}")
    t = 16
    s0, s1, q0, q1, ones = t, t + 1, t + 2, t + 3, t + 4
    a(f"v_mov_b32 v{ones}, 0x3f803f80")
    for r in (s0, s1, q0, q1):
        a(f"v_mov_b32 v{r}, 0")
    for i in range(56):
        if i % 4 == 0:
            a(f"s_waitcnt lgkmcnt({13 - i // 4})")
        x = VX + i
        sx = s0 if (i & 1) == 0 else s1
        qx = q0 if (i & 1) == 0 else q1
        a(f"v_dot2_f32_bf16 v{sx}, v{x}, v{ones}, v{sx}")
        a(f"v_dot2_f32_bf16 v{qx}, v{x}, v{x}, v{qx}")
    a.nop(3)
    a(f"v_add_f32 v{s0}, v{s0}, v{s1}")
    a(f"v_add_f32 v{q0}, v{q0}, v{q1}")
    ln_finalize(a, s0, q0, s1, q1, 24)
    for ks in range(14):
        yv = 32 + 8 * (ks & 1)
        ov = 48 + 4 * (ks & 3)
        for d in range(4):
            x = VX + 4 * ks + d
            a(f"v_lshlrev_b32 v{yv + 2 * d}, 16, v{x}")
            a(f"v_and_b32 v{yv + 2 * d + 1}, 0xffff0000, v{x}")
        for d in range(4):
            a(f"v_pk_fma_f32 {vr(yv + 2 * d, 2)}, {vr(yv + 2 * d, 2)}, v[24:25], v[26:27]")
        for d in range(4):
            a(f"v_cvt_pk_bf16_f32 v{ov + d}, v{yv + 2 * d}, v{yv + 2 * d + 1}")
        a(f"buffer_store_dwordx4 {vr(ov)}, v7, s[40:43], s30 offen offset:{(ks % 4) * 1024}")
        if ks % 4 == 3:
            a("s_add_u32 s30, s30, 4096")
    a.stamp(1)
    a.stamp(2)
    if STAMPS:
        a("s_waitcnt vmcnt(0)")
    a.stamp(3)
    a.stamp(4)
    a.stamp_flush("s[40:43]", 5, 0, 3)
    a(f"s_branch {L_end}")

    a.label("k0_mod")
    a.srd(44, 16, 896)
    a.srd(48, 18, 448 * 2688 * 2)
    a("s_mul_i32 s20, s3, 56")
    a("v_add_u32 v5, s20, v2")
    a("v_lshlrev_b32 v5, 1, v5")
    a("buffer_load_ushort v6, v5, s[44:47], 0 offen")
    a("s_mul_i32 s21, s20, 5376")
    a("s_lshl_b32 s22, s2, 8")
    a("s_add_u32 s22, s22, 1792")
    a("s_add_u32 s21, s21, s22")
    a("v_mul_u32_u24 v8, 5376, v4")
    a("v_lshl_add_u32 v8, v3, 4, v8")
    for n in range(14):
        a(f"buffer_load_dwordx4 {vr(64 + 4 * n)}, v8, s[48:51], s21 offen")
        if n != 13:
            a("s_add_u32 s21, s21, 21504")
    a("v_lshlrev_b32 v9, 2, v4")
    a.stamp(1)
    a("s_waitcnt vmcnt(14)")
    a("v_lshlrev_b32 v6, 16, v6")
    a("v_mul_f32 v10, 0xbfb8aa3b, v6")
    a("v_exp_f32 v10, v10")
    a("s_nop 0")
    a("v_add_f32 v10, 1.0, v10")
    a("v_rcp_f32 v10, v10")
    a("s_nop 0")
    a("v_mul_f32 v10, v6, v10")
    round_bf16_f32(a, "v10", "v10")
    for n in range(14):
        a(f"v_add_u32 v11, {16 * n}, v9")
        a(f"ds_bpermute_b32 v{20 + n}, v11, v10")
    for j in range(8):
        a(f"v_mov_b32 v{40 + j}, 0")
    a("s_waitcnt lgkmcnt(0)")
    for n in range(14):
        a(f"s_waitcnt vmcnt({13 - n})")
        for d in range(4):
            x = 64 + 4 * n + d
            a(f"v_lshlrev_b32 v12, 16, v{x}")
            a(f"v_and_b32 v13, 0xffff0000, v{x}")
            a(f"v_fmac_f32 v{40 + 2 * d}, v{20 + n}, v12")
            a(f"v_fmac_f32 v{41 + 2 * d}, v{20 + n}, v13")
    a.stamp(2)
    a.nop(2)
    for p_ in range(4):
        a(f"v_permlane32_swap_b32 v{40 + 2 * p_}, v{41 + 2 * p_}")
    a.nop(2)
    for p_ in range(4):
        a(f"v_add_f32 v{50 + p_}, v{40 + 2 * p_}, v{41 + 2 * p_}")
    a.nop(2)
    a("v_permlane16_swap_b32 v50, v51")
    a("v_permlane16_swap_b32 v52, v53")
    a.nop(2)
    a("v_add_f32 v54, v50, v51")
    a("v_add_f32 v55, v52, v53")
    a("v_and_b32 v12, 1, v4")
    a("v_lshlrev_b32 v12, 1, v12")
    a("v_lshrrev_b32 v13, 1, v4")
    a("v_or_b32 v12, v12, v13")
    a("v_lshl_add_u32 v12, v3, 3, v12")
    a("v_lshlrev_b32 v12, 2, v12")
    a("s_lshl_b32 s23, s3, 9")
    a("v_add_u32 v12, s23, v12")
    a("ds_write2_b32 v12, v54, v55 offset0:0 offset1:4")
    a("s_waitcnt lgkmcnt(0)")
    a.stamp(3)
    a("s_barrier")
    a("s_cmp_ge_u32 s3, 2")
    a(f"s_cbranch_scc1 {L_end}")
    a("v_lshlrev_b32 v16, 2, v0")
    for w in range(8):
        a(f"ds_read_b32 v{20 + w}, v16 offset:{w * 512}")
    a("s_waitcnt lgkmcnt(0)")
    a("v_add_f32 v20, v20, v21")
    a("v_add_f32 v22, v22, v23")
    a("v_add_f32 v24, v24, v25")
    a("v_add_f32 v26, v26, v27")
    a("v_add_f32 v20, v20, v22")
    a("v_add_f32 v24, v24, v26")
    a("v_add_f32 v20, v20, v24")
    round_bf16_f32(a, "v20", "v20")
    a("v_add_f32 v21, 1.0, v20")
    round_bf16_f32(a, "v21", "v21")
    a("s_lshl_b32 s24, s2, 7")
    a("s_add_u32 s24, s24, 896")
    a("v_add_u32 v22, s24, v0")
    a("v_subrev_u32 v23, 448, v22")
    a("v_subrev_u32 v24, 1792, v22")
    a("v_min_u32 v23, v23, v24")
    a("v_cmp_gt_u32 vcc, 448, v23")
    a("s_nop 1")
    a("v_cndmask_b32 v20, v20, v21, vcc")
    a("v_lshlrev_b32 v23, 1, v22")
    a("v_lshlrev_b32 v22, 2, v22")
    a("buffer_store_dword v20, v22, s[40:43], 0 offen")
    a(f"s_mov_b32 s24, {WS_MODB:#x}")
    a("v_lshrrev_b32 v21, 16, v20")
    a("buffer_store_short v21, v23, s[40:43], s24 offen")
    if STAMPS:
        a("s_waitcnt vmcnt(0)")
    a.stamp(4)
    a.stamp_flush("s[40:43]", 5, 0, 3)
    a.label(L_end)
    a("s_endpgm")
    return kd(name, 120, 0)


def ln_finalize(a, s0, q0, s1, q1, rs):
    for op in ("v_permlane16_swap_b32", "v_permlane32_swap_b32"):
        a(f"v_mov_b32 v{s1}, v{s0}")
        a(f"v_mov_b32 v{q1}, v{q0}")
        a.nop(2)
        a(f"{op} v{s0}, v{s1}")
        a(f"{op} v{q0}, v{q1}")
        a.nop(2)
        a(f"v_add_f32 v{s0}, v{s0}, v{s1}")
        a(f"v_add_f32 v{q0}, v{q0}, v{q1}")
    inv = f32bits(1.0 / 448.0)
    mean, var = s1, q1
    a(f"v_mul_f32 v{mean}, {inv:#x}, v{s0}")
    a(f"v_mul_f32 v{var}, {inv:#x}, v{q0}")
    a(f"v_fma_f32 v{var}, -v{mean}, v{mean}, v{var}")
    a(f"v_max_f32 v{var}, 0, v{var}")
    round_bf16_f32(a, f"v{mean}", f"v{mean}")
    round_bf16_f32(a, f"v{var}", f"v{var}")
    a(f"v_add_f32 v{var}, {f32bits(1e-5):#x}, v{var}")
    round_bf16_f32(a, f"v{var}", f"v{var}")
    a(f"v_sqrt_f32 v{var}, v{var}")
    a("s_nop 0")
    round_bf16_f32(a, f"v{var}", f"v{var}")
    a(f"v_rcp_f32 v{rs}, v{var}")
    a("s_nop 0")
    a(f"v_mov_b32 v{rs + 1}, v{rs}")
    a(f"v_mul_f32 v{rs + 2}, v{mean}, v{rs}")
    a(f"v_sub_f32 v{rs + 2}, 0, v{rs + 2}")
    a(f"v_mov_b32 v{rs + 3}, v{rs + 2}")


def ln_norm(a, vx, rs, v_rd_mod, lds_vaddr, lds_off, packed, xtag, uid):
    def rd(ks):
        b = 16 + 16 * (ks & 1)
        a.t(f"ds_read_b128 {vr(b)}, {v_rd_mod} offset:{ks * 128}", f"{uid}m{ks}")
        a.t(f"ds_read_b128 {vr(b + 4)}, {v_rd_mod} offset:{ks * 128 + 16}", f"{uid}m{ks}")
        a.t(f"ds_read_b128 {vr(b + 8)}, {v_rd_mod} offset:{1792 + ks * 128}", f"{uid}m{ks}")
        a.t(f"ds_read_b128 {vr(b + 12)}, {v_rd_mod} offset:{1792 + ks * 128 + 16}", f"{uid}m{ks}")
    rd(0)
    yv = 48
    for ks in range(14):
        sv = 16 + 16 * (ks & 1)
        cv = sv + 8
        ov = 56 + 4 * (ks & 1)
        if ks < 13:
            rd(ks + 1)
        if xtag is not None:
            a.wait(f"{xtag}{ks}")
        for d in range(4):
            x = vx + 4 * ks + d
            a(f"v_lshlrev_b32 v{yv + 2 * d}, 16, v{x}")
            a(f"v_and_b32 v{yv + 2 * d + 1}, 0xffff0000, v{x}")
        if rs is not None:
            if packed:
                for d in range(4):
                    a(f"v_pk_fma_f32 {vr(yv + 2 * d, 2)}, {vr(yv + 2 * d, 2)}, {vr(rs, 2)}, {vr(rs + 2, 2)}")
            else:
                for d in range(8):
                    a(f"v_fma_f32 v{yv + d}, v{yv + d}, v{rs}, v{rs + 2}")
        a.wait(f"{uid}m{ks}")
        if packed:
            for d in range(4):
                a(f"v_pk_fma_f32 {vr(yv + 2 * d, 2)}, {vr(yv + 2 * d, 2)}, {vr(cv + 2 * d, 2)}, {vr(sv + 2 * d, 2)}")
        else:
            for d in range(8):
                a(f"v_fma_f32 v{yv + d}, v{yv + d}, v{cv + d}, v{sv + d}")
        for d in range(4):
            a(f"v_cvt_pk_bf16_f32 v{ov + d}, v{yv + 2 * d}, v{yv + 2 * d + 1}")
        a.t(f"ds_write_b128 {lds_vaddr}, {vr(ov)} offset:{lds_off + ks * 1024}", f"{uid}w")


def gen_k12(a):
    name = "k1_attn_kernel"
    a.kernel_begin(name)
    L_end = "k1_end"
    D = int(os.environ.get("K1D", "3"))
    NSL = D + 1
    KIMG, VIMG = 98304, 98304 + 24576
    a("s_cmp_ge_u32 s2, 256")
    a(f"s_cbranch_scc1 {L_end}")
    a.stamp(0)
    a("s_load_dwordx2 s[6:7], s[0:1], 88")
    a("v_lshrrev_b32 v1, 6, v0")
    a("v_and_b32 v2, 63, v0")
    a("s_nop 0")
    a("v_readfirstlane_b32 s3, v1")
    a("v_and_b32 v3, 15, v2")
    a("v_lshrrev_b32 v4, 4, v2")
    a("v_lshlrev_b32 v5, 4, v2")
    a("s_lshr_b32 s10, s2, 3")
    a("s_and_b32 s8, s10, 3")
    a("s_and_b32 s11, s2, 3")
    a("s_lshl_b32 s11, s11, 2")
    a("s_add_u32 s8, s8, s11")
    a("s_lshr_b32 s9, s10, 2")
    a("s_and_b32 s11, s2, 4")
    a("s_lshl_b32 s11, s11, 1")
    a("s_add_u32 s9, s9, s11")
    a("s_lshl_b32 s10, s9, 3")
    a("s_add_u32 s10, s10, s3")
    for j in range(3):
        a(f"s_sub_i32 s{20 + j}, s10, {16 - 8 * j}")
        a(f"s_max_i32 s{20 + j}, s{20 + j}, 0")
        a(f"s_mul_i32 s{20 + j}, s{20 + j}, 14336")
        a(f"s_add_u32 s{20 + j}, s{20 + j}, {WS_XH:#x}")
    a("s_lshl_b32 s25, s3, 10")
    a(f"s_mul_i32 s24, s8, {WQ_HS}")
    a("s_add_u32 s24, s24, s25")
    a(f"s_add_u32 s24, s24, {WS_WQKV:#x}")
    a("s_mov_b32 m0, s25")
    a("v_add_u32 v6, 49152, v5")
    a("s_waitcnt lgkmcnt(0)")
    a.srd(16, 6, WS_SIZE)

    def bpiece(n):
        old = a.capture()
        a.t("buffer_load_dwordx4 v5, s[16:19], s24 offen lds", f"B{n}")
        if n < 11:
            a("s_add_u32 s25, s25, 8192")
            a("s_mov_b32 m0, s25")
            a("s_add_u32 s24, s24, 8192")
        return a.release(old)

    def aload(ks, j):
        old = a.capture()
        a.t(f"buffer_load_dwordx4 {ar((ks % NSL) * 12 + 4 * j)}, v5, s[16:19], s{20 + j} offen offset:{(ks % 4) * 1024}", f"A{ks}_{j}")
        if ks % 4 == 3:
            a(f"s_add_u32 s{20 + j}, s{20 + j}, 4096")
        return a.release(old)

    BFB = 12 * NSL
    order = [2, 3, 4, 5, 0, 1]

    def rd(ks, t):
        off = ks * 6144 + t * 1024
        base = "v5" if off < 49152 else "v6"
        off %= 49152
        old = a.capture()
        a.t(f"ds_read_b128 {ar(BFB + 24 * (ks & 1) + 4 * t)}, {base} offset:{off}", f"r{ks}_{t}")
        return a.release(old)

    ACC, S, Q, O, T = 16, 72, 140, 144, 152

    def acc(j, t):
        return ACC + (16 * j + 4 * (t - 2) if t >= 2 else 48 + 4 * t)

    a.lines.extend(bpiece(0))
    for j in range(3):
        a.lines.extend(aload(0, j))
    a.lines.extend(bpiece(1))
    a.lines.extend(bpiece(2))
    for ks in range(1, D):
        for j in range(3):
            a.lines.extend(aload(ks, j))
    a.stamp(1)
    old = a.capture()
    a("v_mov_b32 v8, 0xff800000")
    a("v_lshlrev_b32 v9, 2, v4")
    a("s_sub_i32 s26, 16, s10")
    a("s_cmp_gt_i32 s26, 0")
    a("s_cselect_b32 s27, 0xff800000, 0")
    for r in range(4):
        a(f"v_add_u32 v10, {r}, v9")
        a("v_cmp_gt_u32 vcc, v10, v3")
        a(f"v_mov_b32 v{T + r}, 0x3f803f80")
        a("s_nop 0")
        a(f"v_cndmask_b32 v{S + r}, v8, 0, vcc")
        a(f"v_cndmask_b32 v{S + 64 + r}, 0, v8, vcc")
        a(f"v_min_f32 v{S + r}, s27, v{S + r}")
    for u in range(1, 16):
        a(f"s_cmp_gt_i32 s26, {u}")
        a("s_cselect_b32 s27, 0xff800000, 0")
        for r in range(4):
            a(f"v_mov_b32 v{S + 4 * u + r}, s27")
    a("v_cmp_eq_u32 vcc, 3, v4")
    a("s_lshl_b32 s28, s3, 10")
    a(f"s_add_u32 s28, s28, {KIMG}")
    a(f"v_cndmask_b32 v{T + 2}, v{T + 2}, 0, vcc")
    a(f"v_cndmask_b32 v{T + 3}, v{T + 3}, 0, vcc")
    a("v_add_u32 v10, s28, v5")
    a("s_lshr_b32 s28, s3, 1")
    a("s_lshl_b32 s28, s28, 11")
    a(f"s_add_u32 s28, s28, {VIMG}")
    a("v_add_u32 v11, s28, v5")
    a("s_and_b32 s29, s3, 1")
    a("s_lshl_b32 s28, s29, 3")
    a("v_add_u32 v12, s28, v11")
    a("s_lshl_b32 s30, s10, 14")
    a("s_lshl_b32 s28, s8, 10")
    a("s_add_u32 s30, s30, s28")
    a(f"s_add_u32 s30, s30, {WS_OP:#x}")
    a("s_lshr_b32 s31, s2, 3")
    a("s_lshl_b32 s31, s31, 3")
    a("s_add_u32 s31, s31, s3")
    a("s_min_u32 s32, s31, 195")
    a("s_mul_i32 s33, s32, 21400")
    a("s_lshr_b32 s33, s33, 20")
    a("s_mul_i32 s33, s33, 7168")
    a("s_lshl_b32 s32, s32, 12")
    a("s_add_u32 s32, s32, s33")
    a("s_and_b32 s33, s2, 3")
    a(f"s_mul_i32 s33, s33, {4 * WGU_CB}")
    a("s_add_u32 s32, s32, s33")
    a(f"s_add_u32 s32, s32, {WS_WGU:#x}")
    a("s_and_b32 s31, s31, 127")
    a("s_min_u32 s31, s31, 111")
    a("s_lshl_b32 s31, s31, 12")
    a(f"s_add_u32 s31, s31, {WS_WO:#x}")
    a("v_lshlrev_b32 v13, 6, v2")
    fill = []
    for l in a.release(old):
        if fill and fill[-1][-1].strip().startswith("s_cmp"):
            fill[-1].append(l)
        else:
            fill.append([l])

    a.wait("B0")
    a("s_barrier")
    a.stamp(2)
    for t in order:
        a.lines.extend(rd(0, t))
    bsched = {0: [3, 4], 1: [5], 3: [6], 4: [7], 5: [8], 7: [9], 8: [10], 9: [11]}
    bars = {0: 2, 3: 5, 7: 8, 11: 11}
    for ks in range(15):
        extra = []
        for n in bsched.get(ks, []):
            extra.append(bpiece(n))
        if ks + D < 14:
            for j in range(3):
                extra.append(aload(ks + D, j))
        if ks in bars:
            a.wait(f"B{bars[ks]}")
            a("s_barrier")
        reads = [rd(ks + 1, t) for t in order] if ks < 14 else []
        mf = [(t, j) for t in (2, 3, 4, 5) for j in range(3)] + [(0, 2), (1, 2)]
        seen = set()
        for idx, (t, j) in enumerate(mf):
            tags = []
            if t not in seen:
                tags.append(f"r{ks}_{t}")
                seen.add(t)
            if ks < 14 and idx < 3:
                tags.append(f"A{ks}_{j}")
            if tags:
                a.wait(*tags)
            d = vr(acc(j, t))
            c = "0" if ks == 0 else d
            x = ar((ks % NSL) * 12 + 4 * j) if ks < 14 else vr(T)
            b = ar(BFB + 24 * (ks & 1) + 4 * t)
            if t < 4:
                a(f"v_mfma_f32_16x16x32_bf16 {d}, {b}, {x}, {c}")
            else:
                a(f"v_mfma_f32_16x16x32_bf16 {d}, {x}, {b}, {c}")
            if idx % 2 == 0 and reads:
                a.lines.extend(reads.pop(0))
            elif idx % 2 == 1 and extra:
                a.lines.extend(extra.pop(0))
            elif ks >= 2:
                for _ in range(3):
                    if fill:
                        a.lines.extend(fill.pop(0))
        assert not reads and not extra
    assert not fill
    if PF & 1:
        a("buffer_load_dword v14, v13, s[16:19], s31 offen")
        a("buffer_load_dword v15, v13, s[16:19], s32 offen")
    if CPF & 2:
        a("s_lshr_b32 s31, s2, 3")
        a("s_lshl_b32 s31, s31, 3")
        a("s_add_u32 s31, s31, s3")
        code_pf(a, 31, "k3_wo_kernel", 36, 13, 2)
    a.stamp(3)
    a.nop(4)
    for j in range(3):
        k0, k1 = acc(j, 2), acc(j, 3)
        a(f"v_cvt_pk_bf16_f32 v{k0}, v{k0}, v{k0 + 1}")
        a(f"v_cvt_pk_bf16_f32 v{k0 + 1}, v{k0 + 2}, v{k0 + 3}")
        a(f"v_cvt_pk_bf16_f32 v{k0 + 2}, v{k1}, v{k1 + 1}")
        a(f"v_cvt_pk_bf16_f32 v{k0 + 3}, v{k1 + 2}, v{k1 + 3}")
        a.t(f"ds_write_b128 v10, {vr(k0)} offset:{j * 8192}", "kw")
    for j in range(3):
        for dh in range(2):
            v0_ = acc(j, 4 + dh)
            a(f"v_cvt_pk_bf16_f32 v{v0_}, v{v0_}, v{v0_ + 1}")
            a(f"v_cvt_pk_bf16_f32 v{v0_ + 1}, v{v0_ + 2}, v{v0_ + 3}")
            a.t(f"ds_write_b64 v12, {vr(v0_, 2)} offset:{j * 8192 + dh * 1024}", "kw")
    q0, q1 = acc(2, 0), acc(2, 1)
    a(f"v_cvt_pk_bf16_f32 v{Q}, v{q0}, v{q0 + 1}")
    a(f"v_cvt_pk_bf16_f32 v{Q + 1}, v{q0 + 2}, v{q0 + 3}")
    a(f"v_cvt_pk_bf16_f32 v{Q + 2}, v{q1}, v{q1 + 1}")
    a(f"v_cvt_pk_bf16_f32 v{Q + 3}, v{q1 + 2}, v{q1 + 3}")
    a.wait("kw")
    a("s_barrier")
    a.stamp(4)
    KR = 6
    VF = 24
    P = 16

    def krd(u):
        a.t(f"ds_read_b128 {ar(4 * (u % KR))}, v10 offset:{u * 1024}", f"k{u}")

    def vrd(n):
        a.t(f"ds_read_b128 {ar(VF + 4 * n)}, v11 offset:{n * 1024}", f"v{n}")
    for u in range(KR):
        krd(u)
    m0, m1 = T, T + 1
    for r in (P, P + 1, P + 36, P + 37):
        a(f"v_mov_b32 v{r}, 0")
    cs = (28 ** -0.5) * 1.4426950408889634
    a(f"s_mov_b32 s14, {f32bits(cs):#x}")
    vq = list(range(18))
    for u in range(17):
        a.wait(f"k{u}")
        a(f"v_mfma_f32_16x16x32_bf16 {vr(S + 4 * u)}, {ar(4 * (u % KR))}, {vr(Q)}, {vr(S + 4 * u)}")
        if u + KR < 17:
            krd(u + KR)
        opt = u - 3
        if opt >= 0:
            s_ = S + 4 * opt
            if opt == 0:
                a(f"v_max_f32 v{m0}, v{s_}, v{s_ + 1}")
                a(f"v_max_f32 v{m1}, v{s_ + 2}, v{s_ + 3}")
            else:
                a(f"v_max3_f32 v{m0}, v{m0}, v{s_}, v{s_ + 1}")
                a(f"v_max3_f32 v{m1}, v{m1}, v{s_ + 2}, v{s_ + 3}")
        if u >= 9:
            vrd(vq.pop(0))
    for _ in range(4):
        vrd(vq.pop(0))
    a.nop(2)
    for opt in (14, 15, 16):
        s_ = S + 4 * opt
        a(f"v_max3_f32 v{m0}, v{m0}, v{s_}, v{s_ + 1}")
        a(f"v_max3_f32 v{m1}, v{m1}, v{s_ + 2}, v{s_ + 3}")
    a(f"v_max_f32 v{m0}, v{m0}, v{m1}")
    for op in ("v_permlane16_swap_b32", "v_permlane32_swap_b32"):
        a(f"v_mov_b32 v{m1}, v{m0}")
        a.nop(2)
        a(f"{op} v{m0}, v{m1}")
        a.nop(2)
        a(f"v_max_f32 v{m0}, v{m0}, v{m1}")
    a(f"v_mul_f32 v{m0}, s14, v{m0}")
    a(f"v_sub_f32 v{m0}, 0, v{m0}")
    a.stamp(5)
    a.raw("@SNAP k12")
    a("s_cmp_eq_u32 s29, 1")
    a("s_cbranch_scc1 k1_odd")
    for par in range(2):
        if par:
            a.label("k1_odd")
        a.raw("@RESTORE k12")
        vq2 = list(vq)

        def soft(u):
            for r in range(4):
                a(f"v_fma_f32 v{S + 4 * u + r}, v{S + 4 * u + r}, s14, v{m0}")
            for r in range(4):
                a(f"v_exp_f32 v{S + 4 * u + r}, v{S + 4 * u + r}")

        def pack(u):
            a(f"v_cvt_pk_bf16_f32 v{P + 2 + 2 * u}, v{S + 4 * u}, v{S + 4 * u + 1}")
            a(f"v_cvt_pk_bf16_f32 v{P + 3 + 2 * u}, v{S + 4 * u + 2}, v{S + 4 * u + 3}")

        def pv(gm):
            pb = P + 4 * gm + (0 if par else 2)
            for dh in range(2):
                a.wait(f"v{2 * gm + dh}")
                c = "0" if gm == 0 else vr(O + 4 * dh)
                a(f"v_mfma_f32_16x16x32_bf16 {vr(O + 4 * dh)}, {ar(VF + 4 * (2 * gm + dh))}, {vr(pb)}, {c}")
        last = [(2 * gm if par else min(2 * gm + 1, 16)) for gm in range(9)]
        done = 0
        soft(0)
        for u in range(17):
            if u + 1 < 17:
                soft(u + 1)
            else:
                a("s_nop 0")
            pack(u)
            if vq2:
                vrd(vq2.pop(0))
            while done < 9 and last[done] < u:
                pv(done)
                done += 1
        a.nop(2)
        while done < 9:
            pv(done)
            done += 1
        a.nop(8)
        a(f"v_mov_b32 v{T}, v{O + 4}")
        a(f"v_mov_b32 v{T + 1}, v{O + 4}")
        a.nop(2)
        a(f"v_permlane32_swap_b32 v{T}, v{T + 1}")
        a.nop(2)
        a(f"v_mov_b32 v{T}, v{T + 1}")
        a.nop(2)
        a(f"v_permlane16_swap_b32 v{T}, v{T + 1}")
        a.nop(2)
        a(f"v_rcp_f32 v{T + 1}, v{T + 1}")
        a("s_nop 0")
        for r in range(8):
            a(f"v_mul_f32 v{O + r}, v{O + r}, v{T + 1}")
        for r in range(4):
            a(f"v_cvt_pk_bf16_f32 v{T + 4 + r}, v{O + 2 * r}, v{O + 2 * r + 1}")
        a(f"buffer_store_dwordx4 {vr(T + 4)}, v5, s[16:19], s30 offen")
        a.stamp(6)
        if STAMPS:
            a("s_waitcnt vmcnt(0)")
        a.stamp(7)
        a.stamp_flush("s[16:19]", 8, 1, 3)
        a(f"s_branch {L_end}")
    a.label(L_end)
    a("s_endpgm")
    return kd(name, 160, 96)


def gen_aug(a):
    a.label("k3_aug")
    a("s_sub_u32 s20, s2, 224")
    a("s_lshl_b32 s20, s20, 2")
    a("s_add_u32 s20, s20, s3")
    a("s_mul_i32 s23, s20, 149797")
    a("s_lshr_b32 s21, s23, 20")
    a("s_mul_i32 s23, s21, 7")
    a("s_sub_u32 s22, s20, s23")
    a(f"s_mul_i32 s24, s21, {WGU_CB}")
    a("s_lshl_b32 s22, s22, 10")
    a("s_add_u32 s24, s24, s22")
    a(f"s_add_u32 s24, s24, {WS_WGU:#x}")
    a("v_and_b32 v6, 31, v2")
    a("v_lshrrev_b32 v7, 5, v2")
    a("v_lshlrev_b32 v7, 4, v7")
    a(f"v_add_u32 v8, {WS_MODB + 4 * 896}, v7")
    a(f"v_add_u32 v9, {WS_MODB + 3 * 896}, v7")
    a("v_mov_b32 v10, 0x7fffffff")
    a("v_cmp_eq_u32 vcc, 0, v6")
    a("s_nop 1")
    a("v_cndmask_b32 v10, v10, v8, vcc")
    a("v_cmp_eq_u32 vcc, 1, v6")
    a("s_nop 1")
    a("v_cndmask_b32 v10, v10, v9, vcc")
    for s_ in range(28):
        a(f"buffer_load_dwordx4 {ar(4 * s_)}, v5, s[16:19], s24 offen")
        a("s_add_u32 s24, s24, 7168")
        a(f"buffer_load_dwordx4 {vr(64 + 4 * s_)}, v10, s[16:19], 0 offen offset:{s_ * 32}")
    for s_ in range(28):
        a(f"s_waitcnt vmcnt({2 * (27 - s_)})")
        c = "0" if s_ == 0 else vr(16, 16)
        a(f"v_mfma_f32_32x32x16_bf16 {vr(16, 16)}, {vr(64 + 4 * s_)}, {ar(4 * s_)}, {c}")
    a("v_cmp_gt_u32 vcc, 32, v2")
    a.nop(14)
    for r in range(2):
        a(f"v_cvt_pk_bf16_f32 v{40 + r}, v{16 + r}, v{16 + r}")
        a(f"v_lshlrev_b32 v{40 + r}, 16, v{40 + r}")
        a(f"v_sub_f32 v{40 + r}, v{16 + r}, v{40 + r}")
        a(f"v_cvt_pk_bf16_f32 v{40 + r}, v{16 + r}, v{40 + r}")
        a(f"v_cndmask_b32 v{40 + r}, 0, v{40 + r}, vcc")
    a("v_mov_b32 v42, 0")
    a("v_mov_b32 v43, 0")
    a("buffer_store_dwordx4 v[40:43], v5, s[16:19], s24 offen")


def gen_gemm_res(a, name, ks_total, ws_a, ws_b, res_from_x, gate_off, out_to_dout, D):
    a.kernel_begin(name)
    L_end = name + "_end"
    NG = ks_total // 2
    NS = D + 1
    a(f"s_cmp_ge_u32 s2, {224 if out_to_dout else 252}")
    a(f"s_cbranch_scc1 {L_end}")
    a.stamp(0)
    a("s_load_dwordx2 s[4:5], s[0:1], 0")
    a("s_load_dwordx2 s[6:7], s[0:1], 88")
    a("s_load_dwordx2 s[44:45], s[0:1], 72")
    a("v_lshrrev_b32 v1, 6, v0")
    a("v_and_b32 v2, 63, v0")
    a("s_nop 0")
    a("v_readfirstlane_b32 s3, v1")
    a("v_and_b32 v3, 15, v2")
    a("v_lshrrev_b32 v4, 4, v2")
    a("v_lshlrev_b32 v5, 4, v2")
    a("s_lshr_b32 s10, s2, 3")
    a("s_mul_i32 s8, s10, 149797")
    a("s_lshr_b32 s9, s8, 20")
    a("s_mul_i32 s8, s9, 7")
    a("s_sub_u32 s8, s10, s8")
    a("s_and_b32 s10, s2, 7")
    a("s_lshl_b32 s10, s10, 2")
    a("s_add_u32 s9, s9, s10")
    a("s_lshl_b32 s20, s9, 2")
    a("s_add_u32 s20, s20, s3")
    a(f"s_mul_i32 s20, s20, {ks_total * 1024}")
    a(f"s_add_u32 s20, s20, {ws_a:#x}")
    a("s_lshl_b32 s23, s3, 11")
    a(f"s_mul_i32 s24, s8, {ks_total * 4096}")
    a("s_add_u32 s24, s24, s23")
    a(f"s_add_u32 s24, s24, {ws_b:#x}")
    a("s_mov_b32 s25, s23")
    a("s_lshl_b32 s26, s9, 6")
    a("s_lshl_b32 s27, s3, 4")
    a("s_add_u32 s26, s26, s27")
    a("v_add_u32 v6, s26, v3")
    a("v_mul_u32_u24 v6, 896, v6")
    a("v_lshlrev_b32 v7, 4, v4")
    a("s_lshl_b32 s28, s8, 7")
    a("v_add3_u32 v6, v6, v7, s28")
    a("s_lshl_b32 s29, s9, 1")
    a("s_lshr_b32 s27, s3, 1")
    a("s_add_u32 s29, s29, s27")
    a("s_mul_i32 s29, s29, 28672")
    a("s_lshl_b32 s27, s8, 12")
    a("s_add_u32 s29, s29, s27")
    a("s_and_b32 s27, s3, 1")
    a("s_lshl_b32 s27, s27, 8")
    a("s_add_u32 s29, s29, s27")
    a(f"s_add_u32 s29, s29, {WS_X2:#x}")
    a("v_lshlrev_b32 v10, 9, v4")
    a("v_lshl_add_u32 v10, v3, 4, v10")
    a("v_lshlrev_b32 v8, 5, v4")
    a("s_lshl_b32 s30, s8, 8")
    a(f"s_add_u32 s30, s30, {WS_MOD + gate_off * 4}")
    a("s_waitcnt lgkmcnt(0)")
    a.srd(12, 4, 2048 * 896)
    a.srd(16, 6, WS_SIZE)
    a.srd(48, 44, 2048 * 896)
    if not out_to_dout:
        a("s_cmp_ge_u32 s2, 224")
        a("s_cbranch_scc1 k3_aug")

    def issue(g):
        base = (g % NS) * 8
        a("s_mov_b32 m0, s25")
        for q in range(2):
            ks = 2 * g + q
            a.t(f"buffer_load_dwordx4 {ar(base + 4 * q)}, v5, s[16:19], s20 offen offset:{(ks % 4) * 1024}", f"{name}g{g}")
        if g % 2 == 1:
            a("s_add_u32 s20, s20, 4096")
        for q in range(2):
            a.t(f"buffer_load_dwordx4 v5, s[16:19], s24 offen offset:{q * 1024} lds", f"{name}g{g}")
        a("s_add_u32 s24, s24, 8192")
        if g % NS == NS - 1:
            a("s_mov_b32 s25, s23")
        else:
            a("s_add_u32 s25, s25, 8192")

    def small_loads():
        if res_from_x:
            a.t(f"buffer_load_dwordx4 {vr(16)}, v6, s[12:15], 0 offen", name + "e")
            a.t(f"buffer_load_dwordx4 {vr(20)}, v6, s[12:15], 0 offen offset:64", name + "e")
        else:
            a.t(f"buffer_load_dwordx4 {vr(16)}, v10, s[16:19], s29 offen", name + "e")
            a.t(f"buffer_load_dwordx4 {vr(20)}, v10, s[16:19], s29 offen offset:2048", name + "e")
        for p_ in range(2):
            a.t(f"buffer_load_dwordx4 {vr(24 + 8 * p_)}, v8, s[16:19], s30 offen offset:{p_ * 128}", name + "e")
            a.t(f"buffer_load_dwordx4 {vr(28 + 8 * p_)}, v8, s[16:19], s30 offen offset:{p_ * 128 + 16}", name + "e")
        if not out_to_dout:
            a(f"s_add_u32 s30, s30, {(1792 - gate_off) * 4}")
            for p_ in range(2):
                a.t(f"buffer_load_dwordx4 {vr(112 + 8 * p_)}, v8, s[16:19], s30 offen offset:{p_ * 128}", name + "e")
                a.t(f"buffer_load_dwordx4 {vr(116 + 8 * p_)}, v8, s[16:19], s30 offen offset:{p_ * 128 + 16}", name + "e")

    ACC = 64
    BF = 80
    ROLL = out_to_dout and os.environ.get("ROLL5")
    for g in range(min(D, NG)):
        issue(g)
        if ROLL and g == 0:
            small_loads()
    a.stamp(1)
    if ROLL:
        assert D == 3 and NG % 4 == 0
        for t in range(16):
            a(f"v_mov_b32 v{ACC + t}, 0")
        a(f"s_mov_b32 s31, {NG // 4}")
        a.label(name + "_loop")
        for g in range(4):
            a(f"s_waitcnt vmcnt({8 if g == 3 else 8})" if False else "s_waitcnt vmcnt(8)" if g >= 2 else "s_waitcnt vmcnt(8)")
            a("s_barrier")
            for q in range(2):
                for t in range(4):
                    a(f"ds_read_b128 {vr(BF + 16 * q + 4 * t)}, v5 offset:{(g % NS) * 8192 + q * 4096 + t * 1024}")
            if g == 1:
                a("s_cmp_eq_u32 s31, 1")
                a("s_cselect_b32 s18, 0, s18")
            issue(g + D)
            for q in range(2):
                for t in range(4):
                    a(f"s_waitcnt lgkmcnt({7 - 4 * q - t})")
                    acc = vr(ACC + 4 * t)
                    a(f"v_mfma_f32_16x16x32_bf16 {acc}, {vr(BF + 16 * q + 4 * t)}, {ar((g % NS) * 8 + 4 * q)}, {acc}")
            if g == 3:
                for i in range(8):
                    a(f"v_lshlrev_b32 v{128 + 2 * i}, 16, v{16 + i}")
                    a(f"v_and_b32 v{129 + 2 * i}, 0xffff0000, v{16 + i}")
        a("s_sub_u32 s31, s31, 1")
        a("s_cmp_lg_u32 s31, 0")
        a(f"s_cbranch_scc1 {name}_loop")
        a(f"s_mov_b32 s18, {WS_SIZE:#x}")
        a.stamp(2)
    for g in range(0 if ROLL else NG):
        a.wait(f"{name}g{g}")
        a("s_barrier")
        if g == 0:
            a.stamp(2)
        for q in range(2):
            for t in range(4):
                a.t(f"ds_read_b128 {vr(BF + 16 * q + 4 * t)}, v5 offset:{(g % NS) * 8192 + q * 4096 + t * 1024}", f"{name}r{g}_{q}_{t}")
        if g + D < NG:
            issue(g + D)
        if g == 1:
            small_loads()
        for q in range(2):
            for t in range(4):
                a.wait(f"{name}r{g}_{q}_{t}")
                acc = vr(ACC + 4 * t)
                c = "0" if (g == 0 and q == 0) else acc
                a(f"v_mfma_f32_16x16x32_bf16 {acc}, {vr(BF + 16 * q + 4 * t)}, {ar((g % NS) * 8 + 4 * q)}, {c}")
        if g == NG - 2:
            a.wait(name + "e")
            for i in range(8):
                a(f"v_lshlrev_b32 v{128 + 2 * i}, 16, v{16 + i}")
                a(f"v_and_b32 v{129 + 2 * i}, 0xffff0000, v{16 + i}")
    a.stamp(3)
    a.nop(8)
    for i in range(8):
        a(f"v_pk_fma_f32 {vr(128 + 2 * i, 2)}, {vr(ACC + 2 * i, 2)}, {vr(24 + 2 * i, 2)}, {vr(128 + 2 * i, 2)}")
    for i in range(8):
        a(f"v_cvt_pk_bf16_f32 v{48 + i}, v{128 + 2 * i}, v{129 + 2 * i}")
    if out_to_dout:
        a(f"buffer_store_dwordx4 {vr(48)}, v6, s[48:51], 0 offen")
        a(f"buffer_store_dwordx4 {vr(52)}, v6, s[48:51], 0 offen offset:64")
    else:
        a(f"buffer_store_dwordx4 {vr(48)}, v10, s[16:19], s29 offen")
        a(f"buffer_store_dwordx4 {vr(52)}, v10, s[16:19], s29 offen offset:2048")
        a(f"s_add_u32 s29, s29, {WS_X2S - WS_X2:#x}")
        for i in range(8):
            a(f"v_lshlrev_b32 v{96 + 2 * i}, 16, v{48 + i}")
            a(f"v_and_b32 v{97 + 2 * i}, 0xffff0000, v{48 + i}")
        for i in range(8):
            a(f"v_pk_mul_f32 {vr(96 + 2 * i, 2)}, {vr(96 + 2 * i, 2)}, {vr(112 + 2 * i, 2)}")
        for i in range(8):
            a(f"v_cvt_pk_bf16_f32 v{56 + i}, v{96 + 2 * i}, v{97 + 2 * i}")
        a(f"buffer_store_dwordx4 {vr(56)}, v10, s[16:19], s29 offen")
        a(f"buffer_store_dwordx4 {vr(60)}, v10, s[16:19], s29 offen offset:2048")
        a("v_mov_b32 v40, 0x3f803f80")
        for r in range(41, 45):
            a(f"v_mov_b32 v{r}, 0")
        a("s_nop 0")
        for i in range(8):
            a(f"v_dot2_f32_bf16 v{41 + (i & 1)}, v{48 + i}, v40, v{41 + (i & 1)}")
            a(f"v_dot2_f32_bf16 v{43 + (i & 1)}, v{48 + i}, v{48 + i}, v{43 + (i & 1)}")
        a.nop(3)
        a("v_add_f32 v46, v41, v42")
        a("v_add_f32 v47, v43, v44")
        for op in ("v_permlane16_swap_b32", "v_permlane32_swap_b32"):
            a("v_mov_b32 v41, v46")
            a("v_mov_b32 v42, v47")
            a.nop(2)
            a(f"{op} v46, v41")
            a(f"{op} v47, v42")
            a.nop(2)
            a("v_add_f32 v46, v46, v41")
            a("v_add_f32 v47, v47, v42")
        a("v_lshlrev_b32 v41, 6, v3")
        a("s_lshl_b32 s27, s26, 6")
        a("s_lshl_b32 s28, s8, 3")
        a("s_add_u32 s27, s27, s28")
        a(f"s_add_u32 s27, s27, {WS_ST:#x}")
        a("buffer_store_dwordx2 v[46:47], v41, s[16:19], s27 offen")
    a.stamp(4)
    if STAMPS:
        a("s_waitcnt vmcnt(0)")
    a.stamp(5)
    a.stamp_flush("s[16:19]", 6, 5 if out_to_dout else 3)
    if not out_to_dout:
        a(f"s_branch {L_end}")
        gen_aug(a)
    a.label(L_end)
    a("s_endpgm")
    return kd(name, 144 if out_to_dout else 176, 8 * NS if out_to_dout else 112)


def gen_k4(a):
    name = "k4_ffn1_kernel"
    a.kernel_begin(name)
    L_end = "k4_end"
    NS = 11
    DEPTH = int(os.environ.get('K4D', '2'))
    a("s_cmp_ge_u32 s2, 256")
    a(f"s_cbranch_scc1 {L_end}")
    a.stamp(0)
    a("s_load_dwordx2 s[6:7], s[0:1], 88")
    a("v_lshrrev_b32 v1, 6, v0")
    a("v_and_b32 v2, 63, v0")
    a("s_nop 0")
    a("v_readfirstlane_b32 s3, v1")
    a("v_and_b32 v3, 31, v2")
    a("v_lshrrev_b32 v4, 5, v2")
    a("v_lshlrev_b32 v5, 4, v2")
    a("s_lshr_b32 s10, s2, 3")
    a("s_and_b32 s8, s10, 3")
    a("s_and_b32 s11, s2, 3")
    a("s_lshl_b32 s11, s11, 2")
    a("s_add_u32 s8, s8, s11")
    a("s_lshr_b32 s9, s10, 2")
    a("s_and_b32 s11, s2, 4")
    a("s_lshl_b32 s11, s11, 1")
    a("s_add_u32 s9, s9, s11")
    a("s_lshl_b32 s9, s9, 2")
    a("s_add_u32 s9, s9, s3")
    a("s_mul_i32 s12, s9, 28672")
    a(f"s_add_u32 s12, s12, {WS_X2S:#x}")
    a(f"s_mul_i32 s22, s8, {WGU_CB}")
    a(f"s_add_u32 s22, s22, {WS_WGU:#x}")
    a("s_mul_i32 s23, s3, 3584")
    a("s_mul_i32 s25, s3, 1792")
    a("s_add_u32 s24, s22, s25")
    a(f"s_add_u32 s24, s24, {28 * 7168}")
    a(f"s_add_u32 s25, s25, {(14 % NS) * 14336}")
    a("s_add_u32 s22, s22, s23")
    a("s_mov_b32 s26, s23")
    a("s_lshl_b32 s15, s9, 11")
    a(f"s_add_u32 s15, s15, {WS_ST:#x}")
    a("v_lshlrev_b32 v6, 6, v3")
    a("v_lshl_add_u32 v6, v4, 5, v6")
    a("v_add_u32 v7, 57344, v5")
    a("v_add_u32 v8, 114688, v5")
    a("s_waitcnt lgkmcnt(0)")
    a.stamp(6)
    a.srd(16, 6, WS_SIZE)
    ST = 16
    a.t(f"buffer_load_dwordx4 {vr(ST)}, v6, s[16:19], s15 offen", "st")
    a.t(f"buffer_load_dwordx4 {vr(ST + 4)}, v6, s[16:19], s15 offen offset:16", "st")

    def load_group(g):
        out = []

        def grp(f):
            old = a.capture()
            f()
            out.append(a.release(old))
        if g < 14:
            for s_ in (2 * g, 2 * g + 1):
                def fa(s_=s_):
                    if s_ % 2 == 1:
                        a("s_mov_b32 m0, s26")
                    a.t(f"buffer_load_dwordx4 {ar(4 * s_)}, v5, s[16:19], s12 offen offset:{(s_ % 4) * 1024}", f"g{g}")
                    if s_ % 4 == 3:
                        a("s_add_u32 s12, s12, 4096")
                grp(fa)
            for q in range(3):
                grp(lambda q=q: a.t(f"buffer_load_dwordx4 v5, s[16:19], s22 offen offset:{q * 1024} lds", f"g{g}"))

            def fl():
                a("s_mov_b32 exec_hi, 0")
                a.t("buffer_load_dwordx4 v5, s[16:19], s22 offen offset:3072 lds", f"g{g}")
                a("s_mov_b32 exec_hi, -1")
                a("s_add_u32 s22, s22, 14336")
                if g % NS == NS - 1:
                    a("s_mov_b32 s26, s23")
                else:
                    a("s_add_u32 s26, s26, 14336")
            grp(fl)
        else:
            def fg():
                a("s_mov_b32 m0, s25")
                a("s_nop 0")
                a.t("buffer_load_dwordx4 v5, s[16:19], s24 offen lds", f"g{g}")
                a("s_mov_b32 exec_hi, 0xffff")
                a.t("buffer_load_dwordx4 v5, s[16:19], s24 offen offset:1024 lds", f"g{g}")
                a("s_mov_b32 exec_hi, -1")
            grp(fg)
        return out

    for g in range(DEPTH):
        for f in load_group(g):
            a.lines.extend(f)
    a.stamp(1)
    BF = 64
    ACC = 128
    AUG = 24
    K1R, K2R, S2 = 28, 30, 32

    def rd(s_, t):
        g = s_ >> 1
        off = (g % NS) * 14336 + (s_ & 1) * 7168 + t * 1024
        base = "v5" if off < 57344 else ("v7" if off < 114688 else "v8")
        off %= 57344
        old = a.capture()
        a.t(f"ds_read_b128 {vr(BF + 28 * (s_ & 1) + 4 * t)}, {base} offset:{off}", f"r{s_}_{t}")
        return a.release(old)

    old = a.capture()
    a("v_cmp_eq_u32 vcc, 1, v4")
    a("s_nop 1")
    a.wait("st")
    a(f"v_cndmask_b32 v{ST + 6}, v{ST + 6}, 0, vcc")
    a(f"v_cndmask_b32 v{ST + 7}, v{ST + 7}, 0, vcc")
    a(f"v_add_f32 v{ST}, v{ST}, v{ST + 2}")
    a(f"v_add_f32 v{ST + 1}, v{ST + 1}, v{ST + 3}")
    a(f"v_add_f32 v{ST + 4}, v{ST + 4}, v{ST + 6}")
    a(f"v_add_f32 v{ST + 5}, v{ST + 5}, v{ST + 7}")
    a(f"v_add_f32 v{ST}, v{ST}, v{ST + 4}")
    a(f"v_add_f32 v{ST + 1}, v{ST + 1}, v{ST + 5}")
    a(f"v_mov_b32 v{ST + 2}, v{ST}")
    a(f"v_mov_b32 v{ST + 3}, v{ST + 1}")
    a("s_nop 1")
    a(f"v_permlane32_swap_b32 v{ST}, v{ST + 2}")
    a(f"v_permlane32_swap_b32 v{ST + 1}, v{ST + 3}")
    a("s_nop 1")
    a(f"v_add_f32 v{ST}, v{ST}, v{ST + 2}")
    a(f"v_add_f32 v{ST + 1}, v{ST + 1}, v{ST + 3}")
    inv = f32bits(1.0 / 448.0)
    mean, var = ST + 2, ST + 3
    a(f"v_mul_f32 v{mean}, {inv:#x}, v{ST}")
    a(f"v_mul_f32 v{var}, {inv:#x}, v{ST + 1}")
    a(f"v_fma_f32 v{var}, -v{mean}, v{mean}, v{var}")
    a(f"v_max_f32 v{var}, 0, v{var}")
    a(f"v_sub_f32 v{mean}, 0, v{mean}")
    a(f"v_cvt_pk_bf16_f32 v{AUG}, v{mean}, v{mean}")
    round_bf16_f32(a, f"v{var}", f"v{var}")
    a(f"v_add_f32 v{var}, {f32bits(1e-5):#x}, v{var}")
    round_bf16_f32(a, f"v{var}", f"v{var}")
    a(f"v_sqrt_f32 v{var}, v{var}")
    a("s_nop 0")
    a(f"v_cvt_pk_bf16_f32 v{AUG + 1}, v{var}, v{var}")
    a(f"v_lshlrev_b32 v{var}, 16, v{AUG + 1}")
    a(f"v_rcp_f32 v{mean}, v{var}")
    a(f"v_mul_f32 v{S2}, v{var}, v{var}")
    a(f"v_cndmask_b32 v{AUG}, v{AUG}, 0, vcc")
    a(f"v_cndmask_b32 v{AUG + 1}, v{AUG + 1}, 0, vcc")
    a(f"v_mov_b32 v{AUG + 2}, 0")
    a(f"v_mov_b32 v{AUG + 3}, 0")
    k1 = -2.0 * 0.7978845608028654 * 1.4426950408889634
    k2 = k1 * 0.044715
    a(f"v_mul_f32 v{K1R}, {f32bits(k1):#x}, v{mean}")
    a(f"v_mul_f32 v{K2R}, v{mean}, v{mean}")
    a(f"v_mul_f32 v{K2R}, v{K2R}, v{mean}")
    a(f"v_mul_f32 v{K2R}, {f32bits(k2):#x}, v{K2R}")
    a(f"v_mov_b32 v{S2 + 1}, v{S2}")
    a(f"v_mov_b32 v{K1R + 1}, v{K1R}")
    a(f"v_mov_b32 v{K2R + 1}, v{K2R}")
    a("v_lshrrev_b32 v9, 4, v3")
    a("v_mul_u32_u24 v9, 57344, v9")
    a("v_lshl_add_u32 v9, v4, 8, v9")
    a("v_and_b32 v10, 15, v3")
    a("v_lshl_add_u32 v9, v10, 4, v9")
    a("s_mul_i32 s30, s9, 114688")
    a("s_mul_i32 s31, s8, 3584")
    a("s_add_u32 s30, s30, s31")
    a(f"s_add_u32 s30, s30, {WS_HH:#x}")
    stat_lines = a.release(old)
    stat_groups = []
    cur = []
    n = 0
    for l in stat_lines:
        cur.append(l)
        if not l.strip().startswith("@"):
            n += 1
            if n == 2:
                stat_groups.append(cur)
                cur = []
                n = 0
    if cur:
        stat_groups.append(cur)

    a.wait("g0")
    a("s_barrier")
    a.stamp(2)
    for t in range(7):
        a.lines.extend(rd(0, t))
    for s_ in range(29):
        extra = []
        if s_ == 0:
            extra = load_group(DEPTH)
        if s_ % 2 == 1:
            g = (s_ + 1) // 2
            a.wait(f"g{g}")
            a("s_barrier")
            if g + DEPTH <= 14:
                extra = load_group(g + DEPTH)
        elif s_ >= 12:
            extra = stat_groups[:7]
            stat_groups = stat_groups[7:]
        for t in range(7):
            a.wait(f"r{s_}_{t}")
            acc = vr(ACC + 16 * t, 16)
            c = "0" if s_ == 0 else acc
            x = ar(4 * s_) if s_ < 28 else vr(AUG)
            a(f"v_mfma_f32_32x32x16_bf16 {acc}, {vr(BF + 28 * (s_ & 1) + 4 * t)}, {x}, {c}")
            if s_ < 28:
                a.lines.extend(rd(s_ + 1, t))
            if t < len(extra):
                a.lines.extend(extra[t])
        for f in extra[7:]:
            a.lines.extend(f)
        if s_ == 20 and (CPF & 4):
            a("s_lshr_b32 s34, s2, 3")
            a("s_lshl_b32 s34, s34, 2")
            a("s_add_u32 s34, s34, s3")
            code_pf(a, 34, "k5_ffn2_kernel", 36, 11, 2)
        if s_ == 27 and (PF & 2):
            a("s_lshr_b32 s31, s2, 3")
            a("s_lshl_b32 s31, s31, 2")
            a("s_add_u32 s31, s31, s3")
            a("v_lshlrev_b32 v11, 6, v2")
            for q in range(4):
                a(f"s_add_u32 s32, s31, {128 * q}")
                a("s_min_u32 s32, s32, 391")
                a("s_lshl_b32 s32, s32, 12")
                a(f"s_add_u32 s32, s32, {WS_WD:#x}")
                a(f"buffer_load_dword v{12 + q}, v11, s[16:19], s32 offen")
    assert not stat_groups
    a.stamp(3)
    for t in range(7):
        G = ACC + 16 * t
        U = G + 8
        T = 40
        P = 48
        O = 56 + 4 * (t & 1)
        if t == 6:
            a.nop(4)
        for e in range(0, 8, 2):
            a(f"v_pk_mul_f32 {vr(T + e, 2)}, {vr(G + e, 2)}, {vr(G + e, 2)}")
        for e in range(0, 8, 2):
            a(f"v_pk_fma_f32 {vr(T + e, 2)}, {vr(T + e, 2)}, {vr(K2R, 2)}, {vr(K1R, 2)}")
        for e in range(0, 8, 2):
            a(f"v_pk_mul_f32 {vr(T + e, 2)}, {vr(T + e, 2)}, {vr(G + e, 2)}")
        for e in range(8):
            a(f"v_exp_f32 v{T + e}, v{T + e}")
        for e in range(0, 8, 2):
            a(f"v_pk_mul_f32 {vr(P + e, 2)}, {vr(G + e, 2)}, {vr(U + e, 2)}")
        for e in range(0, 8, 2):
            a(f"v_pk_fma_f32 {vr(T + e, 2)}, {vr(T + e, 2)}, {vr(S2, 2)}, {vr(S2, 2)}")
        for e in range(8):
            a(f"v_rcp_f32 v{T + e}, v{T + e}")
        a("s_nop 0")
        for e in range(0, 8, 2):
            a(f"v_pk_mul_f32 {vr(P + e, 2)}, {vr(P + e, 2)}, {vr(T + e, 2)}")
        for e in range(0, 8, 2):
            a(f"v_cvt_pk_bf16_f32 v{O + e // 2}, v{P + e}, v{P + e + 1}")
        a(f"buffer_store_dwordx4 {vr(O)}, v9, s[16:19], s30 offen offset:{t * 512}")
    a.stamp(4)
    if STAMPS:
        a("s_waitcnt vmcnt(0)")
    a.stamp(5)
    a.stamp_flush("s[16:19]", 7, 4)
    a.label(L_end)
    a("s_endpgm")
    return kd(name, 240, 112)


def main():
    a = Asm()
    K3D = int(os.environ.get("K3D", "3"))
    K5D = int(os.environ.get("K5D", "3"))
    hdr = open("cdna_kernels/" + NAME + ".s.ref").read().split("\n")
    head = [l for l in hdr if l.startswith(";") and "@launch" not in l and "Override" not in l and "grid=ceil" not in l]
    out = "\n".join(head) + "\n"
    out += "; @launch kernel=k0_prep_kernel grid=(256,1,1) block=(512,1,1) lds=61440\n"
    out += "; @launch kernel=k1_attn_kernel grid=(256,1,1) block=(512,1,1) lds=147456\n"
    out += f"; @launch kernel=k3_wo_kernel grid=(252,1,1) block=(256,1,1) lds=98304\n"
    out += "; @launch kernel=k4_ffn1_kernel grid=(256,1,1) block=(256,1,1) lds=157696\n"
    out += f"; @launch kernel=k5_ffn2_kernel grid=(224,1,1) block=(256,1,1) lds=98304\n"
    out += '.amdgcn_target "amdgcn-amd-amdhsa--gfx950"\n.text\n'
    kds = []
    kds.append(gen_k0(a))
    kds.append(gen_k12(a))
    kds.append(gen_gemm_res(a, "k3_wo_kernel", 16, WS_OP, WS_WO, True, 896, False, K3D))
    kds.append(gen_k4(a))
    kds.append(gen_gemm_res(a, "k5_ffn2_kernel", 56, WS_HH, WS_WD, False, 2240, True, K5D))
    a.label("code_end")
    out += a.text()
    out += '.section .rodata,"a"\n'
    out += "".join(kds)
    if STAMPS:
        open(SOUT, "w").write(out)
    else:
        open(OUT, "w").write(out)


if __name__ == "__main__":
    main()
```
